```python
import torch

def _softmax(x, axis=-1):
    return torch.softmax(x, dim=axis)
def _gelu(x):
    return torch.nn.functional.gelu(x, approximate="tanh")
def _silu(x):
    return torch.nn.functional.silu(x)
def _sigmoid(x):
    return torch.sigmoid(x)
def _layernorm(x, axis=-1, eps=1e-5):
    m = x.mean(dim=axis, keepdim=True)
    v = x.var(dim=axis, keepdim=True, unbiased=False)
    return (x - m) / torch.sqrt(v + eps)
def _scatter_add(tgt, idx, src, axis=0):
    return tgt.clone().index_add_(axis, idx, src)
def _segment_sum(src, seg, n):
    out = torch.zeros((n,) + src.shape[1:], dtype=src.dtype)
    return out.index_add_(0, seg, src)
def _pad(x, pw):
    flat = tuple(v for pair in reversed(pw) for v in pair)
    return torch.nn.functional.pad(x, flat)

kernel_name = 'standalone__gqa_softmax__near_ridge'

def setup_inputs():

    _w = (lambda a: (lambda t: t.to(torch.bfloat16) if t.is_floating_point() else t)(torch.as_tensor(a)))
    B, Hq, Hkv, Sq, Sk, D = 8, 32, 8, 64, 1024, 128
    return {
        "q": _w((lambda *s: torch.randn(*s, dtype=torch.bfloat16) * 0.8)(B, Hq, Sq, D)),
        "k": _w((lambda *s: torch.randn(*s, dtype=torch.bfloat16) * 0.8)(B, Hkv, Sk, D)),
        "v": _w((lambda *s: torch.randn(*s, dtype=torch.bfloat16) * 0.05)(B, Hkv, Sk, D)),
    }

def reference(q, k, v):
    B, Hq, Sq, D = q.shape
    Hkv = k.shape[1]
    rep = Hq // Hkv
    k = (lambda x, n, axis: torch.repeat_interleave(x, n, dim=axis))(k, rep, axis=1)
    v = (lambda x, n, axis: torch.repeat_interleave(x, n, dim=axis))(v, rep, axis=1)
    scale = D ** -0.5
    scores = torch.einsum("bhqd,bhkd->bhqk", q, k) * scale
    p = _softmax(scores, axis=-1)
    return torch.einsum("bhqk,bhkd->bhqd", p, v)
```

```python
import sys, math, struct
KN = "standalone__gqa_softmax__near_ridge_kernel"
def fbits(x): return struct.unpack("<I", struct.pack("<f", x))[0]

class Em:
    def __init__(s): s.L = []; s.vm = []; s.lg = []
    def __call__(s, x): s.L.append("    " + x)
    def lab(s, x): s.L.append(x + ":")
    def vmop(s, x, tag): s(x); s.vm.append(tag)
    def lgop(s, x, tag): s(x); s.lg.append(tag)
    def _cnt(s, lst, tag):
        idx = max(i for i, t in enumerate(lst) if t == tag)
        return len(lst) - 1 - idx
    def wvm(s, tag): return f"s_waitcnt vmcnt({min(63, s._cnt(s.vm, tag))})"
    def wlg(s, tag): return f"s_waitcnt lgkmcnt({min(15, s._cnt(s.lg, tag))})"

def gen(path, NS=5, flags="", rot="none", dbg=False):
    e = Em()
    S = [16, 32]; NM = [48, 64]; P = [80, 88]
    KA = 96; VA = 104; KD = 108; VD = 112; LS = [113, 114]; MT = [118, 119]
    QT = 128
    aO = lambda qh, db: (qh * 4 + db) * 16
    aQ = lambda qh, s: 128 + (qh * 8 + s) * 4
    aK = lambda s: 192 + s * 4
    aV = lambda db, ks: 224 + (db * 2 + ks) * 4
    WREG = NS * 8192
    QBASE_SLOT = NS - 1
    qlds = lambda qh: qh * WREG + QBASE_SLOT * 8192
    MXLDS = 2 * WREG + QBASE_SLOT * 8192
    LDS_TOTAL = max(4 * WREG, 131072 + 1024)
    LLDS = 131072
    c = math.log2(math.e) / math.sqrt(128.0)
    hdr = [f"; GQA attention, generated by gen/g1.py", f"; @launch grid=(256,1,1) block=(256,1,1) lds={LDS_TOTAL}",
           '.amdgcn_target "amdgcn-amd-amdhsa--gfx950"', ".text", f".globl {KN}", ".p2align 8", f".type {KN},@function", f"{KN}:"]
    e("s_cmp_ge_u32 s2, 256"); e("s_cbranch_scc1 L_end")
    e("s_load_dwordx4 s[4:7], s[0:1], 0")
    e("s_load_dwordx4 s[8:11], s[0:1], 16")
    e("v_lshrrev_b32 v1, 6, v0"); e("v_and_b32 v0, 63, v0"); e("v_readfirstlane_b32 s20, v1")
    e("s_and_b32 s21, s2, 7"); e("s_lshl_b32 s21, s21, 3"); e("s_lshr_b32 s22, s2, 5"); e("s_add_u32 s21, s21, s22")
    e("s_lshr_b32 s22, s2, 3"); e("s_and_b32 s22, s22, 3")
    e("s_lshl_b32 s23, s21, 18")
    e("s_lshl_b32 s24, s21, 2"); e("s_add_u32 s24, s24, s22"); e("s_lshl_b32 s24, s24, 14")
    e("s_mov_b32 s40, 0")
    e(f"v_mov_b32 v{MT[0]}, 0xff800000"); e(f"v_mov_b32 v{MT[1]}, 0xff800000")
    e("v_lshrrev_b32 v2, 4, v0")
    e("v_and_b32 v3, 15, v0")
    e("v_lshlrev_b32 v4, 4, v0")
    e("v_xor_b32 v5, v3, v2"); e("v_lshlrev_b32 v6, 8, v2")
    for j in range(4):
        e(f"v_xor_b32 v7, {4*j}, v5"); e(f"v_lshl_add_u32 v{KD+j}, v7, 4, v6")
    e("v_lshlrev_b32 v7, 2, v2"); e("v_xor_b32 v7, v7, v3"); e(f"v_lshl_add_u32 v{VD}, v7, 4, v6")
    e(f"s_mul_i32 s25, s20, {WREG}")
    e("s_lshl_b32 s26, s20, 13")
    e("s_lshl_b32 s27, s20, 12")
    if rot == "none": e("s_mov_b32 s41, 0")
    elif rot == "grp": e("s_lshr_b32 s41, s2, 5"); e("s_lshl_b32 s41, s41, 15")
    elif rot == "xg": e("s_lshr_b32 s41, s2, 5"); e("s_add_u32 s41, s41, s2"); e("s_and_b32 s41, s41, 7"); e("s_lshl_b32 s41, s41, 15")
    e("s_add_u32 s41, s41, s26")
    e("s_waitcnt lgkmcnt(0)")
    e("s_add_u32 s12, s4, s24"); e("s_addc_u32 s13, s5, 0"); e("s_mov_b32 s14, 0x4000"); e("s_mov_b32 s15, 0x20000")
    e("s_add_u32 s28, s6, s23"); e("s_addc_u32 s29, s7, 0"); e("s_mov_b32 s30, 0x40000"); e("s_mov_b32 s31, 0x20000")
    e("s_add_u32 s32, s8, s23"); e("s_addc_u32 s33, s9, 0"); e("s_mov_b32 s34, 0x40000"); e("s_mov_b32 s35, 0x20000")
    e("s_add_u32 s36, s10, s24"); e("s_addc_u32 s37, s11, 0"); e("s_mov_b32 s38, 0x4000"); e("s_mov_b32 s39, 0x20000")
    e.lab("L_restart")
    for j in range(4):
        e.vmop(f"buffer_load_dwordx4 v[{QT+4*j}:{QT+4*j+3}], v4, s[12:15], s27 offen offset:{j*1024}", "Q")
    e("s_mov_b32 s42, s41"); e("s_mov_b32 s43, s41")
    posK = lambda j: 0 if j == 0 else 2 * j - 1
    posV = lambda j: 2 * j + 2 if j < 7 else 15
    stream = {}
    for j in range(8): stream[posK(j)] = ("K", j); stream[posV(j)] = ("V", j)
    slot = lambda kind, j: (posK(j) if kind == "K" else posV(j)) % NS
    def dma_list(p):
        kind, j = stream[p]; sl = p % NS
        so = "s42" if kind == "K" else "s43"; srd = "s[28:31]" if kind == "K" else "s[32:35]"
        out = []
        for i in range(8):
            g = []
            if i == 0: g.append(("s", f"s_add_u32 m0, s25, {sl*8192}"))
            if i == 4: g.append(("s", f"s_add_u32 m0, s25, {sl*8192+4096}")); g.append(("s", f"s_add_u32 {so}, {so}, 4096"))
            va = KD + i % 4 if kind == "K" else VD
            if i == 0: g.append(("s", "s_nop 0"))
            g.append(("vm", f"buffer_load_dwordx4 v{va}, {srd}, {so} offen offset:{(i%4)*1024} {flags} lds", (kind, j)))
            if i == 7: g.append(("s", f"s_add_u32 {so}, {so}, {32768-4096}")); g.append(("s", f"s_and_b32 {so}, {so}, 0x3ffff"))
            out.append(g)
        return out
    def emit(item):
        if item[0] == "vm": e.vmop(item[1], item[2])
        elif item[0] == "lg": e.lgop(item[1], item[2])
        elif item[0] == "wvm": e(e.wvm(item[1]))
        elif item[0] == "wlg": e(e.wlg(item[1]))
        else: e(item[1])
    for p in range(NS - 1):
        for g in dma_list(p):
            for it in g: emit(it)
    e("v_and_b32 v8, 31, v0"); e("v_lshrrev_b32 v9, 5, v0")
    e("v_xor_b32 v10, v9, v3")
    e("v_lshlrev_b32 v11, 8, v8"); e("v_add_u32 v12, s25, v11")
    for s in range(8):
        e(f"v_xor_b32 v7, {2*s}, v10"); e(f"v_lshl_add_u32 v{KA+s}, v7, 4, v12")
    e("v_lshrrev_b32 v7, 2, v3")
    e("v_lshl_add_u32 v13, v9, 2, v7")
    e("v_lshlrev_b32 v13, 8, v13"); e("v_add_u32 v13, s25, v13")
    e("v_and_b32 v14, 1, v0"); e("v_lshl_add_u32 v13, v14, 3, v13")
    e("v_and_b32 v14, 1, v2"); e("v_lshlrev_b32 v14, 1, v14")
    e("v_bfe_u32 v15, v0, 1, 1"); e("v_add_u32 v14, v14, v15")
    e("v_lshl_add_u32 v14, v7, 2, v14")
    for db in range(4):
        e(f"v_xor_b32 v7, {4*db}, v14"); e(f"v_lshl_add_u32 v{VA+db}, v7, 4, v13")
    e("s_lshr_b32 s44, s20, 1"); e(f"s_mul_i32 s44, s44, {WREG}"); e("s_and_b32 s45, s20, 1"); e("s_lshl_b32 s45, s45, 12")
    e("s_add_u32 s44, s44, s45"); e(f"s_add_u32 s44, s44, {QBASE_SLOT*8192}")
    e(f"s_mov_b32 s46, {fbits(c):#x}"); e("s_mov_b32 s47, 0xffff0000")
    for r in range(128): e(f"v_accvgpr_write_b32 a{r}, 0")
    e(f"v_mov_b32 v{LS[0]}, 0"); e(f"v_mov_b32 v{LS[1]}, 0")
    e(e.wvm("Q"))
    for j in range(4):
        for r in range(4):
            q = QT + 4 * j + r
            e(f"v_lshlrev_b32 v150, 16, v{q}"); e(f"v_and_b32 v151, s47, v{q}")
            e("v_mul_f32 v150, s46, v150"); e("v_mul_f32 v151, s46, v151")
            e(f"v_cvt_pk_bf16_f32 v{q}, v150, v151")
        e(f"v_add_u32 v152, s44, v{KD+j}")
        e.lgop(f"ds_write_b128 v152, v[{QT+4*j}:{QT+4*j+3}] offset:{1024*j}", "Qw")
    e("s_waitcnt lgkmcnt(0)"); e("s_barrier")
    for s in range(8): e(f"v_subrev_u32 v{144+s}, s25, v{KA+s}")
    for qh in range(2):
        if qh == 1:
            for s in range(8): e(f"v_add_u32 v{144+s}, {WREG}, v{144+s}")
        for s in range(8):
            e.lgop(f"ds_read_b128 a[{aQ(qh,s)}:{aQ(qh,s)+3}], v{144+s} offset:{QBASE_SLOT*8192}", "Qr")
    def kread(j, s): return ("lg", f"ds_read_b128 a[{aK(s)}:{aK(s)+3}], v{KA+s} offset:{slot('K',j)*8192}", ("Kr", j))
    def vread(j, db, ks, u):
        r = aV(db, ks) + 2 * u
        return ("lg", f"ds_read_b64_tr_b16 a[{r}:{r+1}], v{VA+db} offset:{slot('V',j)*8192 + ks*4096 + u*2048}", ("Vr", j))
    def qk(qh, s, first_c):
        cs = first_c if s == 0 else f"v[{S[qh]}:{S[qh]+15}]"
        return f"v_mfma_f32_32x32x16_bf16 v[{S[qh]}:{S[qh]+15}], a[{aK(s)}:{aK(s)+3}], a[{aQ(qh,s)}:{aQ(qh,s)+3}], {cs}"
    def pv(qh, i):
        ks, db = i // 4, i % 4
        o = aO(qh, db)
        return f"v_mfma_f32_32x32x16_bf16 a[{o}:{o+15}], a[{aV(db,ks)}:{aV(db,ks)+3}], v[{P[qh]+4*ks}:{P[qh]+4*ks+3}], a[{o}:{o+15}]"
    e(e.wvm(("K", 0)))
    for s in range(8): emit(kread(0, s))
    e("s_waitcnt lgkmcnt(0)")
    for s in range(8): e(qk(0, s, "0"))
    e(e.wvm(("K", 1)))
    for s in range(8): e(qk(1, s, "0")); emit(kread(1, s))
    e(f"v_lshlrev_b32 v7, 5, v8"); e("v_lshl_add_u32 v7, v9, 2, v7"); e("s_lshl_b32 s45, s20, 3"); e("v_add_u32 v7, s45, v7")
    e(f"v_add_u32 v7, {MXLDS}, v7")
    e(f"v_lshlrev_b32 v15, 5, v8"); e(f"v_add_u32 v15, {MXLDS}, v15")
    for qh in range(2):
        if qh == 1: e("s_nop 7")
        e(f"v_max3_f32 v150, v{S[qh]}, v{S[qh]+1}, v{MT[qh]}")
        for r in range(2, 16, 2): e(f"v_max3_f32 v150, v{S[qh]+r}, v{S[qh]+r+1}, v150")
        e.lgop(f"ds_write_b32 v7, v150 offset:{qh*1024}", "Mw")
    e("s_waitcnt lgkmcnt(0)"); e("s_barrier")
    for qh in range(2):
        e.lgop(f"ds_read_b128 v[{144+8*qh}:{147+8*qh}], v15 offset:{qh*1024}", "Mr")
        e.lgop(f"ds_read_b128 v[{148+8*qh}:{151+8*qh}], v15 offset:{qh*1024+16}", "Mr")
    e("s_waitcnt lgkmcnt(0)"); e("s_barrier")
    nxt = NS - 1
    for g in dma_list(nxt):
        for it in g: emit(it)
    nxt += 1
    for g in dma_list(nxt):
        for it in g: emit(it)
    nxt += 1
    for qh in range(2):
        b = 144 + 8 * qh
        e(f"v_max3_f32 v{b}, v{b}, v{b+1}, v{b+2}"); e(f"v_max3_f32 v{b+3}, v{b+3}, v{b+4}, v{b+5}")
        e(f"v_max3_f32 v{b}, v{b}, v{b+6}, v{b+7}"); e(f"v_max_f32 v{b}, v{b}, v{b+3}")
        for r in range(16): e(f"v_sub_f32 v{NM[qh]+r}, 0, v{b}")
        for r in range(16): e(f"v_sub_f32 v{S[qh]+r}, v{S[qh]+r}, v{b}")
    def softmax(qh):
        out = []
        for r in range(16):
            g = [("v", f"v_exp_f32 v{S[qh]+r}, v{S[qh]+r}")]
            if r >= 1: g.append(("v", f"v_add_f32 v{LS[qh]}, v{LS[qh]}, v{S[qh]+r-1}"))
            if r >= 2 and r % 2 == 0: g.append(("v", f"v_cvt_pk_bf16_f32 v{P[qh]+r//2-1}, v{S[qh]+r-2}, v{S[qh]+r-1}"))
            out.append(g)
        tail = [("v", f"v_add_f32 v{LS[qh]}, v{LS[qh]}, v{S[qh]+15}"), ("v", f"v_cvt_pk_bf16_f32 v{P[qh]+7}, v{S[qh]+14}, v{S[qh]+15}")]
        return out, tail
    e(e.wvm(("V", 0)))
    sm, tail = softmax(0)
    vr = [vread(0, i % 4, i // 4, u) for i in range(8) for u in range(2)]
    for r in range(16):
        for it in sm[r]: emit(it)
        emit(vr[r])
    e("s_nop 0")
    for it in tail: emit(it)
    for t in range(8):
        last = t == 7
        sm1, tail1 = softmax(1)
        sm0, tail0 = softmax(0)
        d1 = dma_list(nxt) if nxt < 16 else [[]] * 8
        d2 = dma_list(nxt + 1) if nxt + 1 < 16 else [[]] * 8
        nxt += 2
        if not last: e(e.wlg(("Kr", t + 1)))
        for s in range(8):
            if not last: e(qk(0, s, f"v[{NM[0]}:{NM[0]+15}]"))
            for it in sm1[s] + d1[s]: emit(it)
        e(e.wlg(("Vr", t)))
        for i in range(8):
            e(pv(0, i))
            for it in sm1[8 + i] + d2[i]: emit(it)
        if last: e("s_nop 0")
        if t + 2 < 8: e(e.wvm(("K", t + 2)))
        for s in range(8):
            if s == 0:
                for it in tail1: emit(it)
            if not last:
                e(qk(1, s, f"v[{NM[1]}:{NM[1]+15}]"))
                for it in sm0[s]: emit(it)
                if t + 2 < 8: emit(kread(t + 2, s))
        if last: e("s_nop 1")
        if not last: e(e.wvm(("V", t + 1)))
        for i in range(8):
            e(pv(1, i))
            if not last:
                for it in sm0[8 + i]: emit(it)
                emit(vread(t + 1, i % 4, i // 4, 0)); emit(vread(t + 1, i % 4, i // 4, 1))
        if not last:
            for it in tail0: emit(it)
    e("v_and_b32 v7, 7, v0"); e("v_lshl_add_u32 v7, v9, 4, v7")
    e("v_lshlrev_b32 v10, 9, v8"); e("s_lshl_b32 s45, s20, 15"); e("v_add_u32 v10, s45, v10")
    for x in range(8):
        e(f"v_xor_b32 v11, {x}, v7"); e(f"v_lshl_add_u32 v{144+x}, v11, 4, v10")
    e(f"v_lshlrev_b32 v11, 5, v8"); e("v_lshl_add_u32 v11, v9, 2, v11"); e("s_lshl_b32 s45, s20, 3"); e("v_add_u32 v11, s45, v11")
    e(f"v_add_u32 v11, {LLDS}, v11")
    e("s_barrier")
    e(f"ds_write_b32 v11, v{LS[0]}"); e(f"ds_write_b32 v11, v{LS[1]} offset:1024")
    for qh in range(2):
        for db in range(4):
            for i in range(4):
                x = 4 * db + i; o = aO(qh, db) + 4 * i
                e(f"ds_write_b128 v{144 + x % 8}, a[{o}:{o+3}] offset:{qh*16384 + (x//8)*128}")
    e("v_and_b32 v12, 1, v2"); e("v_lshlrev_b32 v12, 3, v12"); e("v_lshl_add_u32 v12, v9, 2, v12")
    e("s_lshl_b32 s45, s20, 4"); e("v_add_u32 v12, s45, v12")
    e("v_lshlrev_b32 v13, 2, v9"); e("v_xor_b32 v13, v13, v3")
    e("v_lshlrev_b32 v14, 9, v12")
    for it in range(4):
        e(f"v_xor_b32 v15, {it}, v13"); e(f"v_lshl_add_u32 v{152+it}, v15, 4, v14")
    e(f"v_lshlrev_b32 v15, 5, v12"); e(f"v_add_u32 v15, {LLDS}, v15")
    e(f"v_lshlrev_b32 v14, 5, v0"); e(f"v_add_u32 v14, {LLDS}, v14")
    e("v_lshlrev_b32 v12, 8, v12"); e("v_lshl_add_u32 v12, v3, 4, v12")
    e("s_waitcnt lgkmcnt(0)"); e("s_barrier")
    e("ds_read_b128 v[160:163], v14"); e("ds_read_b128 v[164:167], v14 offset:16")
    for it in range(4):
        e(f"ds_read_b128 v[{168+8*it}:{171+8*it}], v15 offset:{it*32}"); e(f"ds_read_b128 v[{172+8*it}:{175+8*it}], v15 offset:{it*32+16}")
    e("s_waitcnt lgkmcnt(8)")
    for r in range(1, 8): e(f"v_add_f32 v160, v160, v{160+r}")
    e(f"s_mov_b32 s45, {fbits(2.0**40):#x}")
    e("v_cmp_nlt_f32 vcc, v160, s45")
    e("s_cmp_eq_u32 s40, 0"); e("s_cselect_b64 vcc, vcc, 0")
    e("s_cbranch_vccnz L_slow")
    R = 16
    def rd(it):
        for w in range(4):
            for u in range(2):
                b = R + (it % 2) * 32 + w * 8 + u * 4
                off = (w % 2) * 32768 + it * 512 + u * 256
                e(f"ds_read_b128 v[{b}:{b+3}], v{(152 if w < 2 else 156)+it} offset:{off}")
    for it in range(4): e(f"v_add_u32 v{156+it}, 0x10000, v{152+it}")
    rd(0)
    e("s_waitcnt lgkmcnt(8)")
    for it in range(4):
        b = 168 + 8 * it
        for r in range(1, 8): e(f"v_add_f32 v{b}, v{b}, v{b+r}")
        e(f"v_rcp_f32 v{b}, v{b}")
    for it in range(4):
        if it < 3: rd(it + 1); e("s_waitcnt lgkmcnt(8)")
        else: e("s_waitcnt lgkmcnt(0)")
        b = R + (it % 2) * 32
        for r in range(8):
            e(f"v_add_f32 v{b+r}, v{b+r}, v{b+8+r}"); e(f"v_add_f32 v{b+16+r}, v{b+16+r}, v{b+24+r}")
        for r in range(8):
            e(f"v_add_f32 v{b+r}, v{b+r}, v{b+16+r}")
        for r in range(8):
            e(f"v_mul_f32 v{b+r}, v{168+8*it}, v{b+r}")
        for r in range(4):
            e(f"v_cvt_pk_bf16_f32 v{200+4*it+r}, v{b+2*r}, v{b+2*r+1}")
        e(f"buffer_store_dwordx4 v[{200+4*it}:{203+4*it}], v12, s[36:39], 0 offen offset:{it*256}")
    e.lab("L_end")
    e("s_endpgm")
    e.lab("L_slow")
    e("s_waitcnt lgkmcnt(0)"); e("s_barrier")
    e("s_mov_b32 s40, 1"); e("s_mov_b32 s42, s26"); e("s_mov_b32 s45, 0")
    e.lab("L_slow_loop")
    e("s_mov_b32 m0, s25"); e("s_nop 0")
    for i in range(8):
        if i == 4: e("s_add_u32 m0, s25, 4096"); e("s_add_u32 s42, s42, 4096")
        e(f"buffer_load_dwordx4 v{KD+i%4}, s[28:31], s42 offen offset:{(i%4)*1024} lds")
    e(f"s_add_u32 s42, s42, {32768-4096}")
    e("s_waitcnt vmcnt(0)")
    for s in range(8): e(f"ds_read_b128 a[{aK(s)}:{aK(s)+3}], v{KA+s}")
    e("s_waitcnt lgkmcnt(0)")
    for qh in range(2):
        for s in range(8): e(qk(qh, s, "0"))
    e("s_nop 15")
    for qh in range(2):
        for r in range(0, 16, 2): e(f"v_max3_f32 v{MT[qh]}, v{S[qh]+r}, v{S[qh]+r+1}, v{MT[qh]}")
    e("s_add_u32 s45, s45, 1"); e("s_cmp_lt_u32 s45, 8"); e("s_cbranch_scc1 L_slow_loop")
    e("s_branch L_restart")
    tailtxt = ['.section .rodata,"a"', ".p2align 6", f".amdhsa_kernel {KN}",
               "  .amdhsa_next_free_vgpr 512", "  .amdhsa_next_free_sgpr 64", "  .amdhsa_accum_offset 256",
               "  .amdhsa_group_segment_fixed_size 0", "  .amdhsa_kernarg_size 48", "  .amdhsa_user_sgpr_count 2",
               "  .amdhsa_user_sgpr_kernarg_segment_ptr 1", "  .amdhsa_system_sgpr_workgroup_id_x 1", ".end_amdhsa_kernel"]
    open(path, "w").write("\n".join(hdr + e.L + tailtxt) + "\n")
if __name__ == "__main__":
    gen("standalone__gqa_softmax__near_ridge.s")
    gen("g1_nt.s", flags="nt")
    gen("g1_rot.s", rot="xg")
```

```python
import sys, math, struct
KN = "standalone__gqa_softmax__near_ridge_kernel"
def fbits(x): return struct.unpack("<I", struct.pack("<f", x))[0]

class Em:
    def __init__(s): s.L = []; s.vm = []; s.lg = []
    def __call__(s, x): s.L.append("    " + x)
    def lab(s, x): s.L.append(x + ":")
    def vmop(s, x, tag): s(x); s.vm.append(tag)
    def lgop(s, x, tag): s(x); s.lg.append(tag)
    def _cnt(s, lst, tag):
        idx = max(i for i, t in enumerate(lst) if t == tag)
        return len(lst) - 1 - idx
    def wvm(s, tag): return f"s_waitcnt vmcnt({min(63, s._cnt(s.vm, tag))})"
    def wlg(s, tag): return f"s_waitcnt lgkmcnt({min(15, s._cnt(s.lg, tag))})"

def gen(path, NS=5, flags="", rot="none", dbg=False):
    e = Em()
    S = [16, 32]; NM = [48, 64]; P = [80, 88]
    KA = 96; VA = 104; KD = 108; VD = 112; LS = [113, 114]; MT = [118, 119]
    QT = 128
    aO = lambda qh, db: (qh * 4 + db) * 16
    aQ = lambda qh, s: 128 + (qh * 8 + s) * 4
    aK = lambda s: 192 + s * 4
    aV = lambda db, ks: 224 + (db * 2 + ks) * 4
    WREG = NS * 8192
    QBASE_SLOT = NS - 1
    qlds = lambda qh: qh * WREG + QBASE_SLOT * 8192
    MXLDS = 2 * WREG + QBASE_SLOT * 8192
    LDS_TOTAL = max(4 * WREG, 131072 + 1024)
    LLDS = 131072
    c = math.log2(math.e) / math.sqrt(128.0)
    hdr = [f"; GQA attention, generated by gen/g1.py", f"; @launch grid=(256,1,1) block=(256,1,1) lds={LDS_TOTAL}",
           '.amdgcn_target "amdgcn-amd-amdhsa--gfx950"', ".text", f".globl {KN}", ".p2align 8", f".type {KN},@function", f"{KN}:"]
    nst = [0]
    def stamp(name=""):
        if dbg:
            k = nst[0]; e(f"s_memtime s[{52+2*k}:{53+2*k}]"); nst[0] += 1; names.append(name)
    names = []
    e("s_cmp_ge_u32 s2, 256"); e("s_cbranch_scc1 L_end")
    if dbg: e("s_memrealtime s[48:49]")
    stamp("start")
    e("s_load_dwordx4 s[4:7], s[0:1], 0")
    e("s_load_dwordx4 s[8:11], s[0:1], 16")
    e("v_lshrrev_b32 v1, 6, v0"); e("v_and_b32 v0, 63, v0"); e("v_readfirstlane_b32 s20, v1")
    e("s_and_b32 s21, s2, 7"); e("s_lshl_b32 s21, s21, 3"); e("s_lshr_b32 s22, s2, 5"); e("s_add_u32 s21, s21, s22")
    e("s_lshr_b32 s22, s2, 3"); e("s_and_b32 s22, s22, 3")
    e("s_lshl_b32 s23, s21, 18")
    e("s_lshl_b32 s24, s21, 2"); e("s_add_u32 s24, s24, s22"); e("s_lshl_b32 s24, s24, 14")
    e("s_mov_b32 s40, 0")
    e(f"v_mov_b32 v{MT[0]}, 0xff800000"); e(f"v_mov_b32 v{MT[1]}, 0xff800000")
    e("v_lshrrev_b32 v2, 4, v0")
    e("v_and_b32 v3, 15, v0")
    e("v_lshlrev_b32 v4, 4, v0")
    e("v_xor_b32 v5, v3, v2"); e("v_lshlrev_b32 v6, 8, v2")
    for j in range(4):
        e(f"v_xor_b32 v7, {4*j}, v5"); e(f"v_lshl_add_u32 v{KD+j}, v7, 4, v6")
    e("v_lshlrev_b32 v7, 2, v2"); e("v_xor_b32 v7, v7, v3"); e(f"v_lshl_add_u32 v{VD}, v7, 4, v6")
    e(f"s_mul_i32 s25, s20, {WREG}")
    e("s_lshl_b32 s26, s20, 13")
    e("s_lshl_b32 s27, s20, 12")
    if rot == "none": e("s_mov_b32 s41, 0")
    elif rot == "grp": e("s_lshr_b32 s41, s2, 5"); e("s_lshl_b32 s41, s41, 15")
    elif rot == "xg": e("s_lshr_b32 s41, s2, 5"); e("s_add_u32 s41, s41, s2"); e("s_and_b32 s41, s41, 7"); e("s_lshl_b32 s41, s41, 15")
    if rot == "r": e("s_lshl_b32 s41, s22, 16")
    if rot == "r2": e("s_lshr_b32 s41, s22, 1"); e("s_lshl_b32 s41, s41, 17")
    if rot == "r1": e("s_lshl_b32 s41, s22, 15")
    e("s_add_u32 s41, s41, s26")
    e("s_waitcnt lgkmcnt(0)")
    e("s_add_u32 s12, s4, s24"); e("s_addc_u32 s13, s5, 0"); e("s_mov_b32 s14, 0x4000"); e("s_mov_b32 s15, 0x20000")
    e("s_add_u32 s28, s6, s23"); e("s_addc_u32 s29, s7, 0"); e("s_mov_b32 s30, 0x40000"); e("s_mov_b32 s31, 0x20000")
    e("s_add_u32 s32, s8, s23"); e("s_addc_u32 s33, s9, 0"); e("s_mov_b32 s34, 0x40000"); e("s_mov_b32 s35, 0x20000")
    e("s_add_u32 s36, s10, s24"); e("s_addc_u32 s37, s11, 0"); e("s_mov_b32 s38, 0x4000"); e("s_mov_b32 s39, 0x20000")
    e.lab("L_restart")
    for j in range(4):
        e.vmop(f"buffer_load_dwordx4 v[{QT+4*j}:{QT+4*j+3}], v4, s[12:15], s27 offen offset:{j*1024}", "Q")
    e("s_mov_b32 s42, s41"); e("s_mov_b32 s43, s41")
    posK = lambda j: 0 if j == 0 else 2 * j - 1
    posV = lambda j: 2 * j + 2 if j < 7 else 15
    stream = {}
    for j in range(8): stream[posK(j)] = ("K", j); stream[posV(j)] = ("V", j)
    slot = lambda kind, j: (posK(j) if kind == "K" else posV(j)) % NS
    def dma_list(p):
        kind, j = stream[p]; sl = p % NS
        so = "s42" if kind == "K" else "s43"; srd = "s[28:31]" if kind == "K" else "s[32:35]"
        out = []
        for i in range(8):
            g = []
            if i == 0: g.append(("s", f"s_add_u32 m0, s25, {sl*8192}"))
            if i == 4: g.append(("s", f"s_add_u32 m0, s25, {sl*8192+4096}")); g.append(("s", f"s_add_u32 {so}, {so}, 4096"))
            va = KD + i % 4 if kind == "K" else VD
            if i == 0: g.append(("s", "s_nop 0"))
            g.append(("vm", f"buffer_load_dwordx4 v{va}, {srd}, {so} offen offset:{(i%4)*1024} {flags} lds", (kind, j)))
            if i == 7: g.append(("s", f"s_add_u32 {so}, {so}, {32768-4096}")); g.append(("s", f"s_and_b32 {so}, {so}, 0x3ffff"))
            out.append(g)
        return out
    def emit(item):
        if item[0] == "vm": e.vmop(item[1], item[2])
        elif item[0] == "lg": e.lgop(item[1], item[2])
        elif item[0] == "wvm": e(e.wvm(item[1]))
        elif item[0] == "wlg": e(e.wlg(item[1]))
        else: e(item[1])
    for p in range(NS - 1):
        for g in dma_list(p):
            for it in g: emit(it)
    e("v_and_b32 v8, 31, v0"); e("v_lshrrev_b32 v9, 5, v0")
    e("v_xor_b32 v10, v9, v3")
    e("v_lshlrev_b32 v11, 8, v8"); e("v_add_u32 v12, s25, v11")
    for s in range(8):
        e(f"v_xor_b32 v7, {2*s}, v10"); e(f"v_lshl_add_u32 v{KA+s}, v7, 4, v12")
    e("v_lshrrev_b32 v7, 2, v3")
    e("v_lshl_add_u32 v13, v9, 2, v7")
    e("v_lshlrev_b32 v13, 8, v13"); e("v_add_u32 v13, s25, v13")
    e("v_and_b32 v14, 1, v0"); e("v_lshl_add_u32 v13, v14, 3, v13")
    e("v_and_b32 v14, 1, v2"); e("v_lshlrev_b32 v14, 1, v14")
    e("v_bfe_u32 v15, v0, 1, 1"); e("v_add_u32 v14, v14, v15")
    e("v_lshl_add_u32 v14, v7, 2, v14")
    for db in range(4):
        e(f"v_xor_b32 v7, {4*db}, v14"); e(f"v_lshl_add_u32 v{VA+db}, v7, 4, v13")
    e("s_lshr_b32 s44, s20, 1"); e(f"s_mul_i32 s44, s44, {WREG}"); e("s_and_b32 s45, s20, 1"); e("s_lshl_b32 s45, s45, 12")
    e("s_add_u32 s44, s44, s45"); e(f"s_add_u32 s44, s44, {QBASE_SLOT*8192}")
    e(f"s_mov_b32 s46, {fbits(c):#x}"); e("s_mov_b32 s47, 0xffff0000")
    for r in range(128): e(f"v_accvgpr_write_b32 a{r}, 0")
    e(f"v_mov_b32 v{LS[0]}, 0"); e(f"v_mov_b32 v{LS[1]}, 0")
    stamp("preQ")
    e(e.wvm("Q"))
    stamp("Qarr")
    for j in range(4):
        for r in range(4):
            q = QT + 4 * j + r
            e(f"v_lshlrev_b32 v150, 16, v{q}"); e(f"v_and_b32 v151, s47, v{q}")
            e("v_mul_f32 v150, s46, v150"); e("v_mul_f32 v151, s46, v151")
            e(f"v_cvt_pk_bf16_f32 v{q}, v150, v151")
        e(f"v_add_u32 v152, s44, v{KD+j}")
        e.lgop(f"ds_write_b128 v152, v[{QT+4*j}:{QT+4*j+3}] offset:{1024*j}", "Qw")
    e("s_waitcnt lgkmcnt(0)"); e("s_barrier")
    for s in range(8): e(f"v_subrev_u32 v{144+s}, s25, v{KA+s}")
    for qh in range(2):
        if qh == 1:
            for s in range(8): e(f"v_add_u32 v{144+s}, {WREG}, v{144+s}")
        for s in range(8):
            e.lgop(f"ds_read_b128 a[{aQ(qh,s)}:{aQ(qh,s)+3}], v{144+s} offset:{QBASE_SLOT*8192}", "Qr")
    def kread(j, s): return ("lg", f"ds_read_b128 a[{aK(s)}:{aK(s)+3}], v{KA+s} offset:{slot('K',j)*8192}", ("Kr", j))
    def vread(j, db, ks, u):
        r = aV(db, ks) + 2 * u
        return ("lg", f"ds_read_b64_tr_b16 a[{r}:{r+1}], v{VA+db} offset:{slot('V',j)*8192 + ks*4096 + u*2048}", ("Vr", j))
    def qk(qh, s, first_c):
        cs = first_c if s == 0 else f"v[{S[qh]}:{S[qh]+15}]"
        return f"v_mfma_f32_32x32x16_bf16 v[{S[qh]}:{S[qh]+15}], a[{aK(s)}:{aK(s)+3}], a[{aQ(qh,s)}:{aQ(qh,s)+3}], {cs}"
    def pv(qh, i):
        ks, db = i // 4, i % 4
        o = aO(qh, db)
        return f"v_mfma_f32_32x32x16_bf16 a[{o}:{o+15}], a[{aV(db,ks)}:{aV(db,ks)+3}], v[{P[qh]+4*ks}:{P[qh]+4*ks+3}], a[{o}:{o+15}]"
    stamp("Qbar")
    e(e.wvm(("K", 0)))
    stamp("K0arr")
    for s in range(8): emit(kread(0, s))
    e("s_waitcnt lgkmcnt(0)")
    for s in range(8): e(qk(0, s, "0"))
    e(e.wvm(("K", 1)))
    for s in range(8): e(qk(1, s, "0")); emit(kread(1, s))
    e(f"v_lshlrev_b32 v7, 5, v8"); e("v_lshl_add_u32 v7, v9, 2, v7"); e("s_lshl_b32 s45, s20, 3"); e("v_add_u32 v7, s45, v7")
    e(f"v_add_u32 v7, {MXLDS}, v7")
    e(f"v_lshlrev_b32 v15, 5, v8"); e(f"v_add_u32 v15, {MXLDS}, v15")
    for qh in range(2):
        if qh == 1: e("s_nop 7")
        e(f"v_max3_f32 v150, v{S[qh]}, v{S[qh]+1}, v{MT[qh]}")
        for r in range(2, 16, 2): e(f"v_max3_f32 v150, v{S[qh]+r}, v{S[qh]+r+1}, v150")
        e.lgop(f"ds_write_b32 v7, v150 offset:{qh*1024}", "Mw")
    e("s_waitcnt lgkmcnt(0)"); e("s_barrier")
    for qh in range(2):
        e.lgop(f"ds_read_b128 v[{144+8*qh}:{147+8*qh}], v15 offset:{qh*1024}", "Mr")
        e.lgop(f"ds_read_b128 v[{148+8*qh}:{151+8*qh}], v15 offset:{qh*1024+16}", "Mr")
    e("s_waitcnt lgkmcnt(0)"); e("s_barrier")
    stamp("maxx")
    nxt = NS - 1
    for g in dma_list(nxt):
        for it in g: emit(it)
    nxt += 1
    for g in dma_list(nxt):
        for it in g: emit(it)
    nxt += 1
    for qh in range(2):
        b = 144 + 8 * qh
        e(f"v_max3_f32 v{b}, v{b}, v{b+1}, v{b+2}"); e(f"v_max3_f32 v{b+3}, v{b+3}, v{b+4}, v{b+5}")
        e(f"v_max3_f32 v{b}, v{b}, v{b+6}, v{b+7}"); e(f"v_max_f32 v{b}, v{b}, v{b+3}")
        for r in range(16): e(f"v_sub_f32 v{NM[qh]+r}, 0, v{b}")
        for r in range(16): e(f"v_sub_f32 v{S[qh]+r}, v{S[qh]+r}, v{b}")
    def softmax(qh):
        out = []
        for r in range(16):
            g = [("v", f"v_exp_f32 v{S[qh]+r}, v{S[qh]+r}")]
            if r >= 1: g.append(("v", f"v_add_f32 v{LS[qh]}, v{LS[qh]}, v{S[qh]+r-1}"))
            if r >= 2 and r % 2 == 0: g.append(("v", f"v_cvt_pk_bf16_f32 v{P[qh]+r//2-1}, v{S[qh]+r-2}, v{S[qh]+r-1}"))
            out.append(g)
        tail = [("v", f"v_add_f32 v{LS[qh]}, v{LS[qh]}, v{S[qh]+15}"), ("v", f"v_cvt_pk_bf16_f32 v{P[qh]+7}, v{S[qh]+14}, v{S[qh]+15}")]
        return out, tail
    e(e.wvm(("V", 0)))
    sm, tail = softmax(0)
    vr = [vread(0, i % 4, i // 4, u) for i in range(8) for u in range(2)]
    for r in range(16):
        for it in sm[r]: emit(it)
        emit(vr[r])
    e("s_nop 0")
    for it in tail: emit(it)
    for t in range(8):
        stamp(f"it{t}")
        last = t == 7
        sm1, tail1 = softmax(1)
        sm0, tail0 = softmax(0)
        d1 = dma_list(nxt) if nxt < 16 else [[]] * 8
        d2 = dma_list(nxt + 1) if nxt + 1 < 16 else [[]] * 8
        nxt += 2
        if not last: e(e.wlg(("Kr", t + 1)))
        for s in range(8):
            if not last: e(qk(0, s, f"v[{NM[0]}:{NM[0]+15}]"))
            for it in sm1[s] + d1[s]: emit(it)
        e(e.wlg(("Vr", t)))
        for i in range(8):
            e(pv(0, i))
            for it in sm1[8 + i] + d2[i]: emit(it)
        if last: e("s_nop 0")
        if t + 2 < 8: e(e.wvm(("K", t + 2)))
        for s in range(8):
            if s == 0:
                for it in tail1: emit(it)
            if not last:
                e(qk(1, s, f"v[{NM[1]}:{NM[1]+15}]"))
                for it in sm0[s]: emit(it)
                if t + 2 < 8: emit(kread(t + 2, s))
        if last: e("s_nop 1")
        if not last: e(e.wvm(("V", t + 1)))
        for i in range(8):
            e(pv(1, i))
            if not last:
                for it in sm0[8 + i]: emit(it)
                emit(vread(t + 1, i % 4, i // 4, 0)); emit(vread(t + 1, i % 4, i // 4, 1))
        if not last:
            for it in tail0: emit(it)
    e("v_and_b32 v7, 7, v0"); e("v_lshl_add_u32 v7, v9, 4, v7")
    e("v_lshlrev_b32 v10, 9, v8"); e("s_lshl_b32 s45, s20, 15"); e("v_add_u32 v10, s45, v10")
    for x in range(8):
        e(f"v_xor_b32 v11, {x}, v7"); e(f"v_lshl_add_u32 v{144+x}, v11, 4, v10")
    e(f"v_lshlrev_b32 v11, 5, v8"); e("v_lshl_add_u32 v11, v9, 2, v11"); e("s_lshl_b32 s45, s20, 3"); e("v_add_u32 v11, s45, v11")
    e(f"v_add_u32 v11, {LLDS}, v11")
    stamp("loopend")
    e("s_barrier")
    stamp("ebar1")
    e(f"ds_write_b32 v11, v{LS[0]}"); e(f"ds_write_b32 v11, v{LS[1]} offset:1024")
    for qh in range(2):
        for db in range(4):
            for i in range(4):
                x = 4 * db + i; o = aO(qh, db) + 4 * i
                e(f"ds_write_b128 v{144 + x % 8}, a[{o}:{o+3}] offset:{qh*16384 + (x//8)*128}")
    e("v_and_b32 v12, 1, v2"); e("v_lshlrev_b32 v12, 3, v12"); e("v_lshl_add_u32 v12, v9, 2, v12")
    e("s_lshl_b32 s45, s20, 4"); e("v_add_u32 v12, s45, v12")
    e("v_lshlrev_b32 v13, 2, v9"); e("v_xor_b32 v13, v13, v3")
    e("v_lshlrev_b32 v14, 9, v12")
    for it in range(4):
        e(f"v_xor_b32 v15, {it}, v13"); e(f"v_lshl_add_u32 v{152+it}, v15, 4, v14")
    e(f"v_lshlrev_b32 v15, 5, v12"); e(f"v_add_u32 v15, {LLDS}, v15")
    e(f"v_lshlrev_b32 v14, 5, v0"); e(f"v_add_u32 v14, {LLDS}, v14")
    e("v_lshlrev_b32 v12, 8, v12"); e("v_lshl_add_u32 v12, v3, 4, v12")
    e("s_waitcnt lgkmcnt(0)"); stamp("ewr"); e("s_barrier"); stamp("ebar2")
    e("ds_read_b128 v[160:163], v14"); e("ds_read_b128 v[164:167], v14 offset:16")
    for it in range(4):
        e(f"ds_read_b128 v[{168+8*it}:{171+8*it}], v15 offset:{it*32}"); e(f"ds_read_b128 v[{172+8*it}:{175+8*it}], v15 offset:{it*32+16}")
    e("s_waitcnt lgkmcnt(8)")
    for r in range(1, 8): e(f"v_add_f32 v160, v160, v{160+r}")
    e(f"s_mov_b32 s45, {fbits(2.0**40):#x}")
    e("v_cmp_nlt_f32 vcc, v160, s45")
    e("s_cmp_eq_u32 s40, 0"); e("s_cselect_b64 vcc, vcc, 0")
    e("s_cbranch_vccnz L_slow")
    R = 16
    def rd(it):
        for w in range(4):
            for u in range(2):
                b = R + (it % 2) * 32 + w * 8 + u * 4
                off = (w % 2) * 32768 + it * 512 + u * 256
                e(f"ds_read_b128 v[{b}:{b+3}], v{(152 if w < 2 else 156)+it} offset:{off}")
    for it in range(4): e(f"v_add_u32 v{156+it}, 0x10000, v{152+it}")
    rd(0)
    e("s_waitcnt lgkmcnt(8)")
    for it in range(4):
        b = 168 + 8 * it
        for r in range(1, 8): e(f"v_add_f32 v{b}, v{b}, v{b+r}")
        e(f"v_rcp_f32 v{b}, v{b}")
    for it in range(4):
        if it < 3: rd(it + 1); e("s_waitcnt lgkmcnt(8)")
        else: e("s_waitcnt lgkmcnt(0)")
        b = R + (it % 2) * 32
        for r in range(8):
            e(f"v_add_f32 v{b+r}, v{b+r}, v{b+8+r}"); e(f"v_add_f32 v{b+16+r}, v{b+16+r}, v{b+24+r}")
        for r in range(8):
            e(f"v_add_f32 v{b+r}, v{b+r}, v{b+16+r}")
        for r in range(8):
            e(f"v_mul_f32 v{b+r}, v{168+8*it}, v{b+r}")
        for r in range(4):
            e(f"v_cvt_pk_bf16_f32 v{200+4*it+r}, v{b+2*r}, v{b+2*r+1}")
        e(f"buffer_store_dwordx4 v[{200+4*it}:{203+4*it}], v12, s[36:39], 0 offen offset:{it*256}")
    if dbg:
        stamp("stores"); e("s_waitcnt vmcnt(0)"); stamp("end")
        e("s_memrealtime s[50:51]")
        e("s_load_dwordx2 s[4:5], s[0:1], 40"); e("s_waitcnt lgkmcnt(0)")
        e("s_mov_b32 s6, 0x100000"); e("s_mov_b32 s7, 0x20000")
        e("s_lshl_b32 s8, s2, 2"); e("s_add_u32 s8, s8, s20"); e("s_lshl_b32 s8, s8, 7")
        e("v_mov_b32 v16, s48"); e("v_mov_b32 v17, s50")
        e("s_getreg_b32 s9, hwreg(HW_REG_XCC_ID)"); e("v_mov_b32 v18, s9")
        e("s_getreg_b32 s9, hwreg(HW_REG_HW_ID)"); e("v_mov_b32 v19, s9")
        for k in range(nst[0]): e(f"v_mov_b32 v{20+k}, s{52+2*k}")
        e("v_mov_b32 v1, 0"); e("s_mov_b64 exec, 1")
        for j in range(0, 4 + nst[0], 4): e(f"buffer_store_dwordx4 v[{16+j}:{19+j}], v1, s[4:7], s8 offen offset:{j*4}")
        e("s_waitcnt vmcnt(0)")
        open(path + ".names", "w").write(" ".join(names))
    e.lab("L_end")
    e("s_endpgm")
    e.lab("L_slow")
    e("s_waitcnt lgkmcnt(0)"); e("s_barrier")
    e("s_mov_b32 s40, 1"); e("s_mov_b32 s42, s26"); e("s_mov_b32 s45, 0")
    e.lab("L_slow_loop")
    e("s_mov_b32 m0, s25"); e("s_nop 0")
    for i in range(8):
        if i == 4: e("s_add_u32 m0, s25, 4096"); e("s_add_u32 s42, s42, 4096")
        e(f"buffer_load_dwordx4 v{KD+i%4}, s[28:31], s42 offen offset:{(i%4)*1024} lds")
    e(f"s_add_u32 s42, s42, {32768-4096}")
    e("s_waitcnt vmcnt(0)")
    for s in range(8): e(f"ds_read_b128 a[{aK(s)}:{aK(s)+3}], v{KA+s}")
    e("s_waitcnt lgkmcnt(0)")
    for qh in range(2):
        for s in range(8): e(qk(qh, s, "0"))
    e("s_nop 15")
    for qh in range(2):
        for r in range(0, 16, 2): e(f"v_max3_f32 v{MT[qh]}, v{S[qh]+r}, v{S[qh]+r+1}, v{MT[qh]}")
    e("s_add_u32 s45, s45, 1"); e("s_cmp_lt_u32 s45, 8"); e("s_cbranch_scc1 L_slow_loop")
    e("s_branch L_restart")
    tailtxt = ['.section .rodata,"a"', ".p2align 6", f".amdhsa_kernel {KN}",
               "  .amdhsa_next_free_vgpr 512", "  .amdhsa_next_free_sgpr 102", "  .amdhsa_accum_offset 256",
               "  .amdhsa_group_segment_fixed_size 0", "  .amdhsa_kernarg_size 48", "  .amdhsa_user_sgpr_count 2",
               "  .amdhsa_user_sgpr_kernarg_segment_ptr 1", "  .amdhsa_system_sgpr_workgroup_id_x 1", ".end_amdhsa_kernel"]
    open(path, "w").write("\n".join(hdr + e.L + tailtxt) + "\n")
if __name__ == "__main__":
    gen("standalone__gqa_softmax__near_ridge.s")
    gen("g1_nt.s", flags="nt")
    gen("g1_rot.s", rot="xg")
    for r in ("r", "r2", "r1"):
        gen(f"g1_{r}.s", rot=r); gen(f"g1_{r}_dbg.s", rot=r, dbg=True)
    gen("g1_r_nt.s", rot="r", flags="nt")
    gen("g1_sc1.s", flags="sc1")
    gen("g1_sc01.s", flags="sc0 sc1")
    gen("g1_dbg.s", dbg=True)
```

```python
import sys, math, struct
KN = "standalone__gqa_softmax__near_ridge_kernel"
def fbits(x): return struct.unpack("<I", struct.pack("<f", x))[0]
class Em:
    def __init__(s): s.L = []; s.vm = []; s.lg = []; s.P = []
    def __call__(s, x, meta=None): s.L.append("    " + x); s.P.append((x, meta))
    def lab(s, x): s.L.append(x + ":")
    def vmop(s, x, tag, meta=None): s(x, meta); s.vm.append(tag)
    def lgop(s, x, tag): s(x); s.lg.append(tag)
    def _cnt(s, lst, tag):
        idx = max(i for i, t in enumerate(lst) if t == tag)
        return len(lst) - 1 - idx
    def wvm(s, tag): return f"s_waitcnt vmcnt({min(63, s._cnt(s.vm, tag))})"
    def wlg(s, tag): return f"s_waitcnt lgkmcnt({min(15, s._cnt(s.lg, tag))})"

SIGA = [0, 2, 1, 4, 3, 6, 5, 7]; SIGB = [1, 0, 3, 2, 5, 4, 7, 6]
def gen(path, sched=None, flags="", sg="021436570 021436571 103254760 103254761", latev=True, vg1=False, kg4=False,
        dbg=False, spin=None, oflags="", info=None, stride=1, early=False, light=False, p0max=12, kg0=0, vgl=None, pad=0xd00, touch=None, p0a=999, wst=3, preA=4, precomb=False,
        ewat6=(11, 12, 13, 15, 16, 17, 19, 20, 21, 23, 24, 25, 27, 28, 29, 30, 31)):
    if sched is not None and info is None:
        info = {}; gen(None, None, latev=latev, vg1=vg1, kg4=kg4, info=info, early=early, light=light, wst=wst, kg0=kg0, vgl=vgl)
    e = Em(); NS = 5; VG = 0 if vg1 is True else (3 if not vg1 else vg1)
    S = [16, 32]; NM = [48, 64]; P = [80, 88]
    KA = 96; VA = 104; KD = 108; VD = 112; LS = [113, 114]; MT = [118, 119]; QT = 128
    OV = [224, 240]
    def oreg(qh, j, lo=0, n=16):
        if j == 0: return f"v[{OV[qh]+lo}:{OV[qh]+lo+n-1}]"
        o = (qh * 4 + j) * 16; return f"a[{o+lo}:{o+lo+n-1}]"
    aQ = lambda qh, s: 128 + (qh * 8 + s) * 4
    aK = lambda s: 192 + s * 4
    aV = lambda db, ks: 224 + (db * 2 + ks) * 4
    WREG = NS * 8192; QS = (NS - 1) * 8192
    c = math.log2(math.e) / math.sqrt(128.0)
    hdr = ["; GQA attention (B8 Hq32 Hkv8 Sq64 Sk1024 D128, bf16), generated by gen/g4.py",
           f"; @launch grid=(256,1,1) block=(256,1,1) lds={4*WREG}",
           '.amdgcn_target "amdgcn-amd-amdhsa--gfx950"', ".text", f".globl {KN}", ".p2align 12", f".fill {pad//4}, 4, 0xbf810000", ".p2align 8", f".type {KN},@function", f"{KN}:"]
    names = []
    SB = 66
    def stamp(name):
        e.P.append(("", ("stamp", name)))
        if dbg and (dbg is True or name == "end") and name not in ("ewr", "6G3", "chk", "stores", "loopend", "it3", "it5"): k = len(names); e(f"s_memtime s[{SB+2*k}:{SB+1+2*k}]"); names.append(name)
    e("s_load_dwordx2 s[12:13], s[0:1], 0"); e("s_load_dwordx2 s[28:29], s[0:1], 8")
    e("s_load_dwordx2 s[32:33], s[0:1], 16"); e("s_load_dwordx2 s[36:37], s[0:1], 24")
    e("s_lshr_b32 s3, s2, 8"); e("s_cbranch_scc1 L_end")
    if dbg: e("s_memrealtime s[62:63]")
    stamp("start")
    e("v_lshrrev_b32 v1, 6, v0"); e("v_and_b32 v0, 63, v0"); e("v_readfirstlane_b32 s20, v1")
    e("s_and_b32 s21, s2, 7"); e("s_lshl_b32 s21, s21, 5"); e("s_lshr_b32 s22, s2, 3"); e("s_add_u32 s21, s21, s22")
    e("v_lshlrev_b32 v4, 4, v0"); e("v_and_b32 v5, 48, v0"); e(f"v_xor_b32 v{KD}, v4, v5"); e("v_lshlrev_b32 v6, 2, v5")
    e(f"v_xor_b32 v{KD+1}, 64, v{KD}"); e(f"v_xor_b32 v{KD+2}, 128, v{KD}"); e(f"v_xor_b32 v{VD}, v4, v6"); e(f"v_xor_b32 v{KD+3}, 64, v{KD+2}")
    e("s_lshl_b32 s26, s20, 13"); e("s_mul_i32 s25, s26, 5"); e("s_lshl2_add_u32 s27, s21, s20"); e("s_lshl_b32 s27, s27, 12")
    e("s_andn2_b32 s23, s21, 3"); e("s_lshl_b32 s23, s23, 16"); e("s_add_u32 s26, s26, s23")
    pk = lambda x: sum(int(v) << (4 * i) for i, v in enumerate(x[:8])) | (int(x[8]) << 3)
    sgs = [pk(x) for x in sg.split()]
    e("s_bitcmp1_b32 s2, 3"); e(f"s_mov_b32 s44, {sgs[0]:#x}"); e(f"s_cselect_b32 s44, {sgs[1]:#x}, s44")
    if sgs[2:] != sgs[:2]:
        e(f"s_mov_b32 s45, {sgs[2]:#x}"); e(f"s_cselect_b32 s45, {sgs[3]:#x}, s45")
        e("s_bitcmp1_b32 s2, 4"); e("s_cselect_b32 s44, s45, s44")
    e("s_movk_i32 s3, 0x1000")
    e("s_and_b32 s41, s44, 8"); e("s_lshl_b32 s41, s41, 9")
    e("s_add_u32 s42, s25, s41"); e("s_xor_b32 s43, s42, s3")
    e("s_add_u32 s41, s41, s26")
    SO = 46
    made = set()
    def mkoff(j):
        if j in made: return
        made.add(j)
        e("s_and_b32 s45, s44, 7" if j == 0 else f"s_bfe_u32 s45, s44, {(3<<16)|(4*j):#x}")
        e(f"s_lshl_b32 s45, s45, 15"); e(f"s_add_u32 s{SO+j}, s45, s41"); e(f"s_xor_b32 s{SO+8+j}, s{SO+j}, s3")
    for u in (sched or [])[:min(3, (p0a + 3) // 4)]:
        if u[3] == 0: mkoff(u[1])
    e("s_lshl_b32 s14, 1, 22"); e("s_lshl_b32 s15, 1, 17"); e("s_lshl_b32 s30, 1, 24"); e("s_mov_b32 s31, s15")
    e("s_mov_b64 s[34:35], s[30:31]"); e("s_mov_b64 s[38:39], s[14:15]")
    e("s_mov_b32 s40, 0")
    def dotouch():
        e("s_bitcmp1_b32 s20, 1"); e("s_cbranch_scc1 L_pg2"); e("s_cmp_eq_u32 0, 0"); e("s_branch L_pg1"); e.lab("L_back")
    if touch == "start": dotouch()
    e("s_waitcnt lgkmcnt(0)")
    stamp("karg")
    e.lab("L_restart")
    for j in range(4):
        e.vmop(f"buffer_load_dwordx4 v[{QT+4*j}:{QT+4*j+3}], v4, s[12:15], s27 offen offset:{j*1024}", "Q", ("Q", 0, 0, j))
    slots = {}
    if sched is not None:
        freeat = [0, 0, 0, 0, info["qfree"]]; PT = {}; nxt = 0
        for kind, j, h, at in sched:
            at = max(at, nxt)
            if (kind, j) not in slots:
                k = min(range(NS), key=lambda q: freeat[q]); at = max(at, freeat[k])
                slots[(kind, j)] = k; freeat[k] = info["done"].get((kind, j), 10**6)
            if at == 0 and len(PT.get(0, [])) >= p0max: at = 1
            st = 0 if at == 0 else (stride if at >= info["loop0"] else 1)
            for i in range(4): PT.setdefault(at + i * st, []).append((kind, j, h, i))
            nxt = at + 4 * st
            if at + 3 * st + 1 > info["need"][(kind, j)]: return None
    else:
        info["done"] = {}; info["need"] = {}
        PT = {0: [(kind, j, h, i) for kind in "KV" for j in range(8) for h in range(2) for i in range(4)]}
        slots = {(kind, j): 0 for kind in "KV" for j in range(8)}
    slot = lambda kind, j: slots[(kind, j)]
    def dma(kind, j, h, i):
        srd = "s[28:31]" if kind == "K" else "s[32:35]"
        if i == 0:
            x = f"s_add_u32 m0, s{42+h}, {slot(kind, j)*8192}" if slot(kind, j) else f"s_mov_b32 m0, s{42+h}"
            prev = e.L[-1].split()[0]
            if prev.startswith("v_") or prev.startswith("ds_"): e.L.insert(len(e.L) - 1, "    " + x)
            else: e(x, ("skip",)); e("s_nop 0", ("skip",))
        va = KD + i if kind == "K" else VD
        e.vmop(f"buffer_load_dwordx4 v{va}, {srd}, s{SO+8*h+j} offen offset:{i*1024} {flags} lds", (kind, j), (kind, j, h, i))
    npt = [0]
    def pt():
        e.P.append(("", ("pt", npt[0])))
        for u in PT.pop(npt[0], []): dma(*u)
        npt[0] += 1
    def wvm(kind, j):
        if sched is None: info["need"][(kind, j)] = npt[0]
        e(e.wvm((kind, j)), ("wvm", kind, j))
    def wlg(tag):
        e(e.wlg(tag))
        if sched is None and tag[0] in ("Kr", "Vr") and tag[2] == 7: info["done"][(tag[0][0], tag[1])] = npt[0]
    def done(kind, j):
        if sched is None: info["done"][(kind, j)] = npt[0]
    def emit(item):
        if item[0] == "vm": e.vmop(item[1], item[2], item[3])
        elif item[0] == "lg": e.lgop(item[1], item[2])
        else: e(item[1])
    def pop(n):
        for _ in range(n): pt()
    rest0 = PT[0][p0a:]; PT[0] = PT[0][:p0a]
    pop(1); stamp("iss0")
    for j in range(8): mkoff(j)
    e("s_lshl_b32 s24, s21, 14")
    e("s_cmp_eq_u32 s40, 0"); e("s_cbranch_scc0 L_keepm")
    e(f"v_mov_b32 v{MT[0]}, 0xff800000"); e(f"v_mov_b32 v{MT[1]}, v{MT[0]}")
    e.lab("L_keepm")
    e("v_lshrrev_b32 v2, 4, v0"); e("v_and_b32 v3, 15, v0")
    e("v_and_b32 v8, 31, v0"); e("v_lshrrev_b32 v9, 5, v0")
    e("v_xor_b32 v10, v9, v3"); e("v_lshlrev_b32 v11, 8, v8"); e("v_lshl_add_u32 v7, v10, 4, v11")
    e(f"v_add_u32 v{KA}, s25, v7"); e(f"v_add_u32 v144, {QS}, v7")
    for B in (KA, 144):
        for d, x, o in ((1, 32, 0), (2, 64, 0), (4, 128, 0), (3, 32, 2), (5, 32, 4), (6, 64, 4), (7, 32, 6)): e(f"v_xor_b32 v{B+d}, {x}, v{B+o}")
    e("v_lshrrev_b32 v7, 2, v3"); e("v_lshl_add_u32 v13, v9, 2, v7")
    e("v_lshlrev_b32 v13, 8, v13")
    e("v_and_b32 v14, 1, v0"); e("v_lshl_add_u32 v13, v14, 3, v13")
    e("v_and_b32 v14, 1, v2"); e("v_lshlrev_b32 v14, 1, v14")
    e("v_bfe_u32 v15, v0, 1, 1"); e("v_add_u32 v14, v14, v15")
    e("v_xor_b32 v7, s20, v7")
    e("v_lshl_add_u32 v14, v7, 2, v14"); e("v_lshl_add_u32 v13, v14, 4, v13")
    e(f"v_add_u32 v{VA}, s25, v13"); e(f"v_xor_b32 v{VA+1}, 64, v{VA}"); e(f"v_xor_b32 v{VA+2}, 128, v{VA}"); e(f"v_xor_b32 v{VA+3}, 64, v{VA+2}")
    e("s_lshr_b32 s16, s20, 1"); e(f"s_mul_i32 s16, s16, {WREG}"); e("s_and_b32 s17, s20, 1"); e("s_lshl_b32 s17, s17, 12")
    e("s_add_u32 s16, s16, s17"); e(f"s_add_u32 s16, s16, {QS}")
    for j in range(4): e(f"v_add_u32 v{160+j}, s16, v{KD+j}")
    e(f"s_mov_b32 s18, {fbits(c):#x}"); e("s_mov_b32 s19, 0xffff0000")
    e(f"v_mov_b32 v{LS[0]}, 0"); e(f"v_mov_b32 v{LS[1]}, 0")
    e("v_add_u32 v120, s25, v4")
    for j in range(1, 4):
        e(f"s_xor_b32 s17, s20, {j}"); e(f"s_mul_i32 s17, s17, {WREG}"); e(f"v_add_u32 v{120+j}, s17, v4"); e(f"v_add_u32 v{124+j}, s17, v13")
    e("v_lshl_add_u32 v124, v9, 4, v11"); e("s_lshl_b32 s17, s20, 6"); e("v_add_u32 v124, s17, v124"); e("s_add_u32 s23, s24, 8192")
    stamp("addr")
    for u in rest0: dma(*u)
    if touch == "addr": dotouch()
    stamp("preQ")
    for j in range(4):
        e(f"s_waitcnt vmcnt({len(e.vm) - 1 - j})", ("wq", j))
        if j == 0: stamp("Qarr")
        for r in range(4):
            q = QT + 4 * j + r
            e(f"v_lshlrev_b32 v{164+2*r}, 16, v{q}"); e(f"v_and_b32 v{165+2*r}, s19, v{q}")
        for r in range(4): e(f"v_pk_mul_f32 v[{164+2*r}:{165+2*r}], v[{164+2*r}:{165+2*r}], s[18:19] op_sel_hi:[1,0]")
        for r in range(4): e(f"v_cvt_pk_bf16_f32 v{QT+4*j+r}, v{164+2*r}, v{165+2*r}")
        e.lgop(f"ds_write_b128 v{160+j}, v[{QT+4*j}:{QT+4*j+3}] offset:{1024*j}", "Qw")
        pop(1)
    e("s_waitcnt lgkmcnt(0)"); e("s_barrier")
    stamp("Qbar")
    def kread(j, s): return ("lg", f"ds_read_b128 a[{aK(s)}:{aK(s)+3}], v{KA+s} offset:{slot('K',j)*8192}", ("Kr", j, s))
    def vread(j, i, u):
        db, ks = i % 4, i // 4; r = aV(db, ks) + 2 * u
        return ("lg", f"ds_read_b64_tr_b16 a[{r}:{r+1}], v{VA+db} offset:{slot('V',j)*8192 + ks*4096 + u*2048}", ("Vr", j, i))
    def qk(qh, s, first_c):
        cs = first_c if s == 0 else f"v[{S[qh]}:{S[qh]+15}]"
        return f"v_mfma_f32_32x32x16_bf16 v[{S[qh]}:{S[qh]+15}], a[{aK(s)}:{aK(s)+3}], a[{aQ(qh,s)}:{aQ(qh,s)+3}], {cs}"
    def pv(qh, i, zero=False):
        ks, db = i // 4, i % 4; o = oreg(qh, db)
        return f"v_mfma_f32_32x32x16_bf16 {o}, a[{aV(db,ks)}:{aV(db,ks)+3}], v[{P[qh]+4*ks}:{P[qh]+4*ks+3}], {'0' if zero and ks == 0 else o}"
    for s in range(8): e.lgop(f"ds_read_b128 a[{aQ(0,s)}:{aQ(0,s)+3}], v{144+s}", ("Qr", 0, s))
    pop(4); wvm("K", 0)
    stamp("K0arr")
    for s in range(8): emit(kread(0, s))
    pop(2)
    for s in range(8):
        e.lgop(f"ds_read_b128 a[{aQ(1,s)}:{aQ(1,s)+3}], v{144+s} offset:{WREG}", ("Qr", 1, s))
        wlg(("Kr", 0, s)); e(qk(0, s, "0")); pop(1)
    def rowmax(qh, t0):
        o = [f"v_max3_f32 v{t0}, v{S[qh]}, v{S[qh]+1}, v{MT[qh]}", f"v_max3_f32 v{t0+1}, v{S[qh]+2}, v{S[qh]+3}, v{S[qh]+4}"]
        for r in range(5, 15, 2): o.append(f"v_max3_f32 v{t0+(r//2)%2}, v{S[qh]+r}, v{S[qh]+r+1}, v{t0+(r//2)%2}")
        o += [f"v_max3_f32 v{t0}, v{t0}, v{t0+1}, v{S[qh]+15}", f"v_mov_b32 v{t0+1}, v{t0}", "s_nop 1",
              f"v_permlane32_swap_b32 v{t0}, v{t0+1}", f"v_max_f32 v{t0}, v{t0}, v{t0+1}"]
        o += [f"v_sub_f32 v{S[qh]+r}, v{S[qh]+r}, v{t0}" for r in range(16)]
        o2 = [f"v_sub_f32 v{NM[qh]+r}, 0, v{t0}" for r in range(16)]
        return o, o2
    m0a, m0b = rowmax(0, 164); m1a, m1b = rowmax(1, 166)
    kw = False
    for s in range(8):
        e(e.wlg(("Qr", 1, s))); e(qk(1, s, "0"))
        if s >= 2:
            for _ in range(5):
                if m0a: e(m0a.pop(0))
        else: pop(1)
    stamp("qk0")
    e("s_barrier")
    if sched is None: info["qfree"] = npt[0]
    for x in m0a: e(x)
    def softmax(qh):
        out = []
        for r in range(16):
            g = [("v", f"v_exp_f32 v{S[qh]+r}, v{S[qh]+r}")]
            if light:
                if r >= 2 and r % 2 == 0: g += [("v", f"v_add_f32 v{LS[qh]}, v{LS[qh]}, v{S[qh]+r-2}"), ("v", f"v_add_f32 v{LS[qh]}, v{LS[qh]}, v{S[qh]+r-1}")]
            elif r >= 1: g.append(("v", f"v_add_f32 v{LS[qh]}, v{LS[qh]}, v{S[qh]+r-1}"))
            if r >= 2 and r % 2 == 0: g.append(("v", f"v_cvt_pk_bf16_f32 v{P[qh]+r//2-1}, v{S[qh]+r-2}, v{S[qh]+r-1}"))
            out.append(g)
        tail = [("v", f"v_add_f32 v{LS[qh]}, v{LS[qh]}, v{S[qh]+15}"), ("v", f"v_cvt_pk_bf16_f32 v{P[qh]+7}, v{S[qh]+14}, v{S[qh]+15}")]
        if light: tail.insert(0, ("v", f"v_add_f32 v{LS[qh]}, v{LS[qh]}, v{S[qh]+14}"))
        return out, tail
    sm, tail = softmax(0)
    for r in range(16):
        for it in sm[r]: emit(it)
        e(m0b[r]); pop(1 if r % 2 else 0)
    for it in tail: emit(it)
    for i, x in enumerate(m1a):
        e(x)
        if i % 4 == 3: pop(1)
    wvm("K", 1)
    for s in range(8): emit(kread(1, s))
    for i, x in enumerate(m1b):
        e(x)
        if i % 4 == 3: pop(1)
    if sched is None: info["loop0"] = npt[0]
    fs = [k for k in range(NS) if k != slot("V", 7)]
    ch = lambda q: fs[q // 8] * 8192 + (q % 8) * 1024
    def owrite(qh, j, i): return ("lg", f"ds_write_b128 v120, {oreg(qh,j,4*i,4)} offset:{ch((qh*3+j-1)*4+i)}", "Ow")
    def pwrite(qh, ks): return ("lg", f"ds_write_b128 v120, v[{P[qh]+4*ks}:{P[qh]+4*ks+3}] offset:{ch(24+2*qh+ks)}", "Ow")
    ew = []
    def wr(g):
        for _ in range(ewat.count(g)): emit(ew.pop(0))
    for t in range(7):
        stamp(f"it{t}")
        sm1, tail1 = softmax(1); sm0, tail0 = softmax(0)
        vlate = t == 0 or vg1
        ewat = []
        if t == 6:
            ew = [owrite(0, j, i) for j in range(1, 4) for i in range(4)] + [pwrite(0, 0)] + [owrite(1, j, i) for j in range(1, 4) for i in range(4)]
            ewat = list(ewat6); assert len(ewat) >= 13
        order = [1, 5, 2, 6, 3, 7, 0, 4] if t == 6 else list(range(8))
        if vgl: VG = vgl[t]
        for s in range(8):
            if s == 0: wlg(("Kr", t + 1, 7 if kg0 < 2 else 3))
            if s == 2 and kg0 >= 2: wlg(("Kr", t + 1, 7))
            e(qk(0, s, f"v[{NM[0]}:{NM[0]+15}]"))
            if early and not (vlate and s == VG): pt()
            for it in sm1[s]: emit(it)
            if vlate and s == VG: wvm("V", t)
            if vlate and s >= VG:
                n = 8 - VG
                for i in range((s - VG) * 8 // n, (s - VG + 1) * 8 // n): emit(vread(t, order[i], 0)); emit(vread(t, order[i], 1))
            if not (early and not (vlate and s == VG)): pt()
        for n, i in enumerate(order):
            if vlate:
                if n == 0: e(e.wlg(("Vr", t, order[wst])))
                if n == wst + 1: e(e.wlg(("Vr", t, order[7]))); done("V", t)
            elif n == 0: wlg(("Vr", t, 7))
            e(pv(0, i, t == 0))
            if early: pt()
            for it in sm1[8 + n]: emit(it)
            wr(8 + n)
            if not early: pt()
        if t == 6: stamp("6G3")
        if t + 2 < 8 and not kg4: wvm("K", t + 2)
        for it in tail1: emit(it)
        for s in range(8):
            e(qk(1, s, f"v[{NM[1]}:{NM[1]+15}]"))
            if early: pt()
            for it in sm0[s]: emit(it)
            if t + 2 < 8 and not kg4: emit(kread(t + 2, s))
            wr(16 + s)
            if not early: pt()
        rdv = t < 6 and not vg1
        if rdv: wvm("V", t + 1)
        for n, i in enumerate(order):
            if t + 2 < 8 and kg4 and n == kg0: wvm("K", t + 2)
            e(pv(1, i, t == 0))
            if early: pt()
            for it in sm0[8 + n]: emit(it)
            if rdv: emit(vread(t + 1, i, 0)); emit(vread(t + 1, i, 1))
            if t + 2 < 8 and kg4 and 0 <= n - kg0 < 4: emit(kread(t + 2, 2 * (n - kg0))); emit(kread(t + 2, 2 * (n - kg0) + 1))
            wr(24 + n)
            if not early: pt()
        e("s_nop 0")
        for it in tail0: emit(it)
    stamp("it7")
    sm1, tail1 = softmax(1)
    ML = 16; G = 52; RB = [128, 176]
    aP = lambda qh, j, ks: [0, 8, 64, 72, 192, 200][qh * 3 + j - 1] + 4 * ks
    def v7(j):
        return [("lg", f"ds_read_b64_tr_b16 a[{aV(j,ks)+2*u}:{aV(j,ks)+2*u+1}], v{VA if j == 0 else 124+j} offset:{slot('V',7)*8192 + ks*4096 + u*2048}", ("V7", j))
                for ks in range(2) for u in range(2)]
    def rdpo(qh, j):
        o = [("lg", f"ds_read_b128 a[{aP(qh,j,ks)}:{aP(qh,j,ks)+3}], v{120+j} offset:{ch(24+2*qh+ks)}", ("Or", qh, j)) for ks in range(2)]
        for i in range(4):
            b = RB[qh] + (j - 1) * 16 + 4 * i
            o.append(("lg", f"ds_read_b128 v[{b}:{b+3}], v{120+j} offset:{ch((qh*3+j-1)*4+i)}", ("Or", qh, j)))
        return o
    def mf(qh, j, ks):
        b = RB[qh] + (j - 1) * 16
        e(f"v_mfma_f32_32x32x16_bf16 v[{b}:{b+15}], a[{aV(j,ks)}:{aV(j,ks)+3}], a[{aP(qh,j,ks)}:{aP(qh,j,ks)+3}], v[{b}:{b+15}]")
    def gcalc(qh):
        n = [ML + 4 * j + 2 * qh for j in range(4)]; t = 48 + 2 * qh
        o = [f"v_min3_f32 v{t}, v{n[0]}, v{n[1]}, v{n[2]}", f"v_min_f32 v{t}, v{t}, v{n[3]}"]
        o += [f"v_sub_f32 v{G+4*qh+j}, v{t}, v{n[j]}" for j in range(4)]
        o += [f"v_exp_f32 v{G+4*qh+j}, v{G+4*qh+j}" for j in range(4)]
        o += [f"v_mul_f32 v{t+1}, v{G+4*qh}, v{n[0]+1}"] + [f"v_fma_f32 v{t+1}, v{G+4*qh+j}, v{n[j]+1}, v{t+1}" for j in range(1, 4)]
        o += [f"v_rcp_f32 v{t+1}, v{t+1}", "s_nop 0"] + [f"v_mul_f32 v{G+4*qh+j}, v{G+4*qh+j}, v{t+1}" for j in range(4)]
        return o
    def comb(qh, j, lo=0, hi=16):
        r = G + 4 * qh + j; g = f"v[{r & ~1}:{(r & ~1)+1}]"; s = r & 1; o = []
        for x in range(lo, hi, 2):
            d = OV[qh] + x; b = RB[qh] + (j - 1) * 16 + x
            o.append(f"v_pk_mul_f32 v[{d}:{d+1}], v[{d}:{d+1}], {g} op_sel:[0,{s}] op_sel_hi:[1,{s}]" if j == 0 else
                     f"v_pk_fma_f32 v[{d}:{d+1}], v[{b}:{b+1}], {g}, v[{d}:{d+1}] op_sel:[0,{s},0] op_sel_hi:[1,{s},1]")
        return o
    def fin(qh, k):
        cb = 32 + 8 * qh + 4 * k; o = OV[qh] + 8 * k
        return [f"v_cvt_pk_bf16_f32 v{cb+x}, v{o+2*x}, v{o+2*x+1}" for x in (0, 2, 1, 3)] + ["s_nop 0",
               f"v_permlane32_swap_b32 v{cb}, v{cb+2}", f"v_permlane32_swap_b32 v{cb+1}, v{cb+3}",
               f"buffer_store_dwordx4 v[{cb}:{cb+3}], v124, s[36:39], s{24-qh} offen offset:{k*32} {oflags}"]
    def run(L):
        for x in L: emit(x) if isinstance(x, tuple) else e(x)
    def sm(*rs):
        for r in rs: run(sm1[r])
    def w(n):
        for _ in range(n):
            if ew: emit(ew.pop(0))
    g0 = gcalc(0); g1 = gcalc(1)
    e(f"v_mov_b32 v60, v{LS[0]}"); emit(pwrite(0, 1)); e(f"v_mov_b32 v{ML}, v{NM[0]}"); e(f"v_mov_b32 v{ML+2}, v{NM[1]}")
    e(f"v_permlane32_swap_b32 v60, v{LS[0]}"); e(f"v_add_f32 v{ML+1}, v60, v{LS[0]}")
    e.lgop(f"ds_write_b128 v120, v[{ML}:{ML+3}] offset:{ch(28)}", "OwA")
    pt()
    assert not PT and len(e.vm) == 4 + 128, (PT.keys(), len(e.vm))
    wvm("V", 7); run(v7(0))
    sm(*range(0, preA))
    e(e.wlg("OwA")); e("s_barrier"); stamp("barA")
    for j in range(1, 4): e.lgop(f"ds_read_b128 v[{ML+4*j}:{ML+3+4*j}], v{120+j} offset:{ch(28)}", "ml")
    run(v7(1)); run(rdpo(0, 1))
    rs = list(range(preA, 16))
    def smn(n):
        for _ in range(n):
            if rs: sm(rs.pop(0))
    e(e.wlg(("V7", 0))); e(pv(0, 0)); run(v7(2)); smn(1); e(pv(0, 4)); run(rdpo(0, 2)); smn(2)
    e(e.wlg(("Or", 0, 1))); mf(0, 1, 0); run(v7(3)); smn(1); mf(0, 1, 1); run(rdpo(0, 3)); smn(2)
    e(e.wlg(("Or", 0, 2))); mf(0, 2, 0); smn(1); w(1); mf(0, 2, 1); smn(1); w(1); smn(1)
    e(e.wlg(("Or", 0, 3))); mf(0, 3, 0); w(1); smn(1); mf(0, 3, 1); w(1)
    while rs: smn(1); w(1)
    e("s_nop 0"); run(tail1)
    e(f"v_mov_b32 v61, v{LS[1]}"); emit(pwrite(1, 0)); e(pv(1, 0)); emit(pwrite(1, 1))
    e(f"v_permlane32_swap_b32 v61, v{LS[1]}"); e(f"v_add_f32 v{ML+3}, v61, v{LS[1]}"); e(pv(1, 4))
    e.lgop(f"ds_write_b32 v120, v{ML+3} offset:{ch(28)+12}", "Ow")
    gg = g0[:10] + g1[:10] + g0[10:]
    while ew: w(1); run(gg[:5]); gg = gg[5:]
    run(gg)
    e(f"s_mov_b32 s17, {fbits(2.0**60):#x}")
    e(f"v_max3_u32 v60, v{ML+1}, v{ML+3}, v{ML+5}"); e(f"v_max3_u32 v60, v60, v{ML+9}, v{ML+13}")
    if precomb: run(comb(0, 0)); run(comb(0, 1))
    stamp("loopend")
    e("s_waitcnt lgkmcnt(0)"); stamp("ewr"); e("s_barrier"); stamp("ebar")
    run(rdpo(1, 1))
    for j in range(1, 4): e.lgop(f"ds_read_b32 v{ML+3+4*j}, v{120+j} offset:{ch(28)+12}", "ml")
    run(rdpo(1, 2))
    if not precomb: run(comb(0, 0)); run(comb(0, 1))
    run(comb(0, 2)); run(comb(0, 3))
    f0 = fin(0, 0); f1 = fin(0, 1)
    sc = [f"v_mul_f32 v{OV[1]+x}, v{OV[1]+x}, v{G+4}" for x in range(16)]
    e(e.wlg(("Or", 1, 1))); mf(1, 1, 0); run(rdpo(1, 3)); mf(1, 1, 1); run(f0[:4] + f1[:4] + f0[5:])
    e(e.wlg(("Or", 1, 2))); mf(1, 2, 0); run(f1[5:]); run(g1[10:15]); mf(1, 2, 1); run(g1[16:])
    e(f"v_max3_u32 v60, v60, v{ML+7}, v{ML+11}"); e(f"v_max_u32 v60, v60, v{ML+15}")
    e("v_cmp_le_u32 vcc, s17, v60"); e("s_cmp_eq_u32 s40, 0")
    e(e.wlg(("Or", 1, 3))); mf(1, 3, 0); run(sc[:6]); mf(1, 3, 1)
    e("s_cselect_b64 vcc, vcc, 0"); run(sc[6:]); e("s_cbranch_vccnz L_slow")
    stamp("chk")
    f0 = fin(1, 0); f1 = fin(1, 1)
    run(comb(1, 1, 0, 8)); run(comb(1, 2, 0, 8)); run(comb(1, 3, 0, 8)); run(f0[:4]); run(comb(1, 1, 8, 16)); run(f0[5:])
    run(comb(1, 2, 8, 16)); run(comb(1, 3, 8, 16)); run(f1)
    if spin:
        stamp("stores"); e("s_waitcnt vmcnt(0)"); stamp("end"); e("s_waitcnt lgkmcnt(0)")
        a, b = names.index(spin[0]), names.index(spin[1])
        e("s_cmp_eq_u32 s2, 133"); e("s_cbranch_scc0 L_end"); e("s_cmp_eq_u32 s20, 0"); e("s_cbranch_scc0 L_end")
        e(f"s_sub_u32 s4, s{SB+2*b}, s{SB+2*a}"); e("s_lshl_b32 s4, s4, 2"); e("s_min_u32 s4, s4, 0x40000")
        k = names.index("end")
        e.lab("L_spin"); e("s_sleep 1"); e("s_memtime s[6:7]"); e("s_waitcnt lgkmcnt(0)")
        e(f"s_sub_u32 s6, s6, s{SB+2*k}"); e("s_cmp_lt_u32 s6, s4"); e("s_cbranch_scc1 L_spin")
    elif dbg:
        stamp("stores"); e("s_waitcnt vmcnt(0)"); stamp("end")
        e("s_memrealtime s[64:65]")
        e("s_load_dwordx2 s[4:5], s[0:1], 40"); e("s_waitcnt lgkmcnt(0)")
        e("s_mov_b32 s6, 0x100000"); e("s_mov_b32 s7, 0x20000")
        e("s_lshl_b32 s8, s2, 2"); e("s_add_u32 s8, s8, s20"); e("s_lshl_b32 s8, s8, 7")
        e("v_mov_b32 v16, s62"); e("v_mov_b32 v17, s64"); e("v_mov_b32 v18, 0"); e("v_mov_b32 v19, 0")
        for k in range(len(names)): e(f"v_mov_b32 v{20+k}, s{SB+2*k}")
        e("v_mov_b32 v1, 0"); e("s_mov_b64 exec, 1")
        for j in range(0, 4 + len(names), 4): e(f"buffer_store_dwordx4 v[{16+j}:{19+j}], v1, s[4:7], s8 offen offset:{j*4}")
        e("s_waitcnt vmcnt(0)")
        open(path + ".names", "w").write(" ".join(names))
    assert len(names) <= 18, names
    e.lab("L_end")
    e("s_endpgm")
    e.lab("L_slow")
    e("s_waitcnt lgkmcnt(0)"); e("s_barrier")
    e("s_mov_b32 s40, 1"); e("s_mov_b32 s16, s26"); e("s_mov_b32 s17, 0")
    e.lab("L_slow_loop")
    e("s_mov_b32 m0, s25"); e("s_nop 0")
    for i in range(8):
        if i == 4: e("s_add_u32 m0, s25, 4096"); e("s_add_u32 s16, s16, 4096")
        e(f"buffer_load_dwordx4 v{KD+i%4}, s[28:31], s16 offen offset:{(i%4)*1024} lds")
    e(f"s_add_u32 s16, s16, {32768-4096}")
    e("s_waitcnt vmcnt(0)")
    for s in range(8): e(f"ds_read_b128 a[{aK(s)}:{aK(s)+3}], v{KA+s}")
    e("s_waitcnt lgkmcnt(0)")
    for qh in range(2):
        for s in range(8): e(qk(qh, s, "0"))
    e("s_nop 15")
    for qh in range(2):
        for r in range(0, 16, 2): e(f"v_max3_f32 v{MT[qh]}, v{S[qh]+r}, v{S[qh]+r+1}, v{MT[qh]}")
    e("s_add_u32 s17, s17, 1"); e("s_cmp_lt_u32 s17, 8"); e("s_cbranch_scc1 L_slow_loop")
    e("s_branch L_restart")
    tailtxt = ['.section .rodata,"a"', ".p2align 6", f".amdhsa_kernel {KN}",
               "  .amdhsa_next_free_vgpr 512", "  .amdhsa_next_free_sgpr 102", "  .amdhsa_accum_offset 256",
               "  .amdhsa_group_segment_fixed_size 0", "  .amdhsa_kernarg_size 48", "  .amdhsa_user_sgpr_count 2",
               "  .amdhsa_user_sgpr_kernarg_segment_ptr 1", "  .amdhsa_system_sgpr_workgroup_id_x 1", ".end_amdhsa_kernel"]
    if path and touch:
        import subprocess, re
        for pg in (1, 2):
            open("_t.s", "w").write("\n".join(hdr + e.L + [f"L_pg{k}:" for k in range(pg, 3)] + tailtxt) + "\n")
            subprocess.check_call("clang -target amdgcn-amd-amdhsa -mcpu=gfx950 -c _t.s -o _t.o", shell=True)
            ad = [int(m, 16) for m in re.findall(r"// ([0-9A-F]{12}):", subprocess.check_output("llvm-objdump -d _t.o", shell=True).decode())]
            ad = [a - pad for a in ad if a >= pad]
            idx = [i for i, x in enumerate(e.L) if x.startswith(" ")]; assert len(idx) == len(ad)
            k = idx[min(i for i, a in enumerate(ad) if a >= 4096 * pg and e.L[idx[i]].split()[0].startswith("v_mfma"))]
            e.L[k:k] = [f"L_pg{pg}:", "    s_cbranch_scc1 L_back"]
    if path: open(path, "w").write("\n".join(hdr + e.L + tailtxt) + "\n")
    return e.P

def parse(s): return [(u[0], int(u[1]), "ab".index(u[2]), int(u[4:])) for u in s.split()]
def both(name, sched, **kw):
    for dbg in (False, True, "lite"):
        assert gen(f"mb/{name}{ {False: '', True: '_dbg', 'lite': '_l'}[dbg]}.s", parse(sched), dbg=dbg, **kw) is not None
```

```python
import sys, math, struct
KN = "standalone__gqa_softmax__near_ridge_kernel"
def fbits(x): return struct.unpack("<I", struct.pack("<f", x))[0]
class Em:
    def __init__(s): s.L = []; s.vm = []; s.lg = []; s.P = []
    def __call__(s, x, meta=None): s.L.append("    " + x); s.P.append((x, meta))
    def lab(s, x): s.L.append(x + ":")
    def vmop(s, x, tag, meta=None): s(x, meta); s.vm.append(tag)
    def lgop(s, x, tag): s(x); s.lg.append(tag)
    def _cnt(s, lst, tag):
        idx = max(i for i, t in enumerate(lst) if t == tag)
        return len(lst) - 1 - idx
    def wvm(s, tag): return f"s_waitcnt vmcnt({min(63, s._cnt(s.vm, tag))})"
    def wlg(s, tag): return f"s_waitcnt lgkmcnt({min(15, s._cnt(s.lg, tag))})"

SIGA = [0, 2, 1, 4, 3, 6, 5, 7]; SIGB = [1, 0, 3, 2, 5, 4, 7, 6]
def gen(path, sched=None, flags="", sg="021436570 021436571 103254760 103254761", latev=True, vg1=False, kg4=False,
        dbg=False, spin=None, oflags="", info=None, stride=1, early=False, light=False, p0max=12, kg0=0, vgl=None, pad=0xd00, touch=None, p0a=999, wst=3, preA=4, precomb=False,
        ewat6=(11, 12, 13, 15, 16, 17, 19, 20, 21, 23, 24, 25, 27, 28, 29, 30, 31)):
    if sched is not None and info is None:
        info = {}; gen(None, None, latev=latev, vg1=vg1, kg4=kg4, info=info, early=early, light=light, wst=wst, kg0=kg0, vgl=vgl)
    e = Em(); NS = 5; VG = 0 if vg1 is True else (3 if not vg1 else vg1)
    S = [16, 32]; NM = [48, 64]; P = [80, 88]
    KA = 96; VA = 104; KD = 108; VD = 112; LS = [113, 114]; MT = [118, 119]; QT = 128
    OV = [224, 240]
    def oreg(qh, j, lo=0, n=16):
        if j == 0: return f"v[{OV[qh]+lo}:{OV[qh]+lo+n-1}]"
        o = (qh * 4 + j) * 16; return f"a[{o+lo}:{o+lo+n-1}]"
    aQ = lambda qh, s: 128 + (qh * 8 + s) * 4
    aK = lambda s: 192 + s * 4
    aV = lambda db, ks: 224 + (db * 2 + ks) * 4
    WREG = NS * 8192; QS = (NS - 1) * 8192
    c = math.log2(math.e) / math.sqrt(128.0)
    hdr = ["; GQA attention (B8 Hq32 Hkv8 Sq64 Sk1024 D128, bf16), generated by gen/g5.py",
           f"; @launch grid=(256,1,1) block=(256,1,1) lds={4*WREG}",
           '.amdgcn_target "amdgcn-amd-amdhsa--gfx950"', ".text", f".globl {KN}", ".p2align 12", f".fill {pad//4}, 4, 0xbf810000", ".p2align 8", f".type {KN},@function", f"{KN}:"]
    names = []
    SB = 66
    def stamp(name):
        e.P.append(("", ("stamp", name)))
        if dbg and (dbg is True or name == "end") and name not in ("ewr", "6G3", "chk", "stores", "loopend", "it3", "it5"): k = len(names); e(f"s_memtime s[{SB+2*k}:{SB+1+2*k}]"); names.append(name)
    e("s_load_dwordx2 s[12:13], s[0:1], 0"); e("s_load_dwordx2 s[28:29], s[0:1], 8")
    e("s_load_dwordx2 s[32:33], s[0:1], 16"); e("s_load_dwordx2 s[36:37], s[0:1], 24")
    e("s_lshr_b32 s3, s2, 8"); e("s_cbranch_scc1 L_end")
    if dbg: e("s_memrealtime s[62:63]")
    stamp("start")
    e("v_lshrrev_b32 v1, 6, v0"); e("v_and_b32 v0, 63, v0"); e("v_readfirstlane_b32 s20, v1")
    e("s_and_b32 s21, s2, 7"); e("s_lshl_b32 s21, s21, 5"); e("s_lshr_b32 s22, s2, 3"); e("s_add_u32 s21, s21, s22")
    e("v_lshlrev_b32 v4, 4, v0"); e("v_and_b32 v5, 48, v0"); e(f"v_xor_b32 v{KD}, v4, v5"); e("v_lshlrev_b32 v6, 2, v5")
    e(f"v_xor_b32 v{KD+1}, 64, v{KD}"); e(f"v_xor_b32 v{KD+2}, 128, v{KD}"); e(f"v_xor_b32 v{VD}, v4, v6"); e(f"v_xor_b32 v{KD+3}, 64, v{KD+2}")
    e("s_lshl_b32 s26, s20, 13"); e("s_mul_i32 s25, s26, 5"); e("s_lshl2_add_u32 s27, s21, s20"); e("s_lshl_b32 s27, s27, 12")
    e("s_andn2_b32 s23, s21, 3"); e("s_lshl_b32 s23, s23, 16"); e("s_add_u32 s26, s26, s23")
    pk = lambda x: sum(int(v) << (4 * i) for i, v in enumerate(x[:8])) | (int(x[8]) << 3)
    sgs = [pk(x) for x in sg.split()]
    e("s_bitcmp1_b32 s2, 3"); e(f"s_mov_b32 s44, {sgs[0]:#x}"); e(f"s_cselect_b32 s44, {sgs[1]:#x}, s44")
    if sgs[2:] != sgs[:2]:
        e(f"s_mov_b32 s45, {sgs[2]:#x}"); e(f"s_cselect_b32 s45, {sgs[3]:#x}, s45")
        e("s_bitcmp1_b32 s2, 4"); e("s_cselect_b32 s44, s45, s44")
    e("s_movk_i32 s3, 0x1000")
    e("s_and_b32 s41, s44, 8"); e("s_lshl_b32 s41, s41, 9")
    e("s_add_u32 s42, s25, s41"); e("s_xor_b32 s43, s42, s3")
    e("s_add_u32 s41, s41, s26")
    SO = 46
    made = set()
    def mkoff(j):
        if j in made: return
        made.add(j)
        e("s_and_b32 s45, s44, 7" if j == 0 else f"s_bfe_u32 s45, s44, {(3<<16)|(4*j):#x}")
        e(f"s_lshl_b32 s45, s45, 15"); e(f"s_add_u32 s{SO+j}, s45, s41"); e(f"s_xor_b32 s{SO+8+j}, s{SO+j}, s3")
    for u in (sched or [])[:min(3, (p0a + 3) // 4)]:
        if u[3] == 0: mkoff(u[1])
    e("s_lshl_b32 s14, 1, 22"); e("s_lshl_b32 s15, 1, 17"); e("s_lshl_b32 s30, 1, 24"); e("s_mov_b32 s31, s15")
    e("s_mov_b64 s[34:35], s[30:31]"); e("s_mov_b64 s[38:39], s[14:15]")
    e("s_mov_b32 s40, 0")
    def dotouch():
        e("s_bitcmp1_b32 s20, 1"); e("s_cbranch_scc1 L_pg2"); e("s_cmp_eq_u32 0, 0"); e("s_branch L_pg1"); e.lab("L_back")
    if touch == "start": dotouch()
    e("s_waitcnt lgkmcnt(0)")
    stamp("karg")
    e.lab("L_restart")
    for j in range(4):
        e.vmop(f"buffer_load_dwordx4 v[{QT+4*j}:{QT+4*j+3}], v4, s[12:15], s27 offen offset:{j*1024}", "Q", ("Q", 0, 0, j))
    slots = {}
    if sched is not None:
        freeat = [0, 0, 0, 0, info["qfree"]]; PT = {}; nxt = 0
        for kind, j, h, at in sched:
            at = max(at, nxt)
            if (kind, j) not in slots:
                k = min(range(NS), key=lambda q: freeat[q]); at = max(at, freeat[k])
                slots[(kind, j)] = k; freeat[k] = info["done"].get((kind, j), 10**6)
            if at == 0 and len(PT.get(0, [])) >= p0max: at = 1
            st = 0 if at == 0 else (stride if at >= info["loop0"] else 1)
            for i in range(4): PT.setdefault(at + i * st, []).append((kind, j, h, i))
            nxt = at + 4 * st
            if at + 3 * st + 1 > info["need"][(kind, j)]: return None
    else:
        info["done"] = {}; info["need"] = {}
        PT = {0: [(kind, j, h, i) for kind in "KV" for j in range(8) for h in range(2) for i in range(4)]}
        slots = {(kind, j): 0 for kind in "KV" for j in range(8)}
    slot = lambda kind, j: slots[(kind, j)]
    def dma(kind, j, h, i):
        srd = "s[28:31]" if kind == "K" else "s[32:35]"
        if i == 0:
            x = f"s_add_u32 m0, s{42+h}, {slot(kind, j)*8192}" if slot(kind, j) else f"s_mov_b32 m0, s{42+h}"
            prev = e.L[-1].split()[0]
            if prev.startswith("v_") or prev.startswith("ds_"): e.L.insert(len(e.L) - 1, "    " + x)
            else: e(x, ("skip",)); e("s_nop 0", ("skip",))
        va = KD + i if kind == "K" else VD
        e.vmop(f"buffer_load_dwordx4 v{va}, {srd}, s{SO+8*h+j} offen offset:{i*1024} {flags} lds", (kind, j), (kind, j, h, i))
    npt = [0]
    def pt():
        e.P.append(("", ("pt", npt[0])))
        for u in PT.pop(npt[0], []): dma(*u)
        npt[0] += 1
    def wvm(kind, j):
        if sched is None: info["need"][(kind, j)] = npt[0]
        e(e.wvm((kind, j)), ("wvm", kind, j))
    def wlg(tag):
        e(e.wlg(tag))
        if sched is None and tag[0] in ("Kr", "Vr") and tag[2] == 7: info["done"][(tag[0][0], tag[1])] = npt[0]
    def done(kind, j):
        if sched is None: info["done"][(kind, j)] = npt[0]
    def emit(item):
        if item[0] == "vm": e.vmop(item[1], item[2], item[3])
        elif item[0] == "lg": e.lgop(item[1], item[2])
        else: e(item[1])
    def pop(n):
        for _ in range(n): pt()
    rest0 = PT[0][p0a:]; PT[0] = PT[0][:p0a]
    pop(1); stamp("iss0")
    for j in range(8): mkoff(j)
    e("s_lshl_b32 s24, s21, 14")
    e("s_cmp_eq_u32 s40, 0"); e("s_cbranch_scc0 L_keepm")
    e(f"v_mov_b32 v{MT[0]}, 0"); e(f"v_mov_b32 v{MT[1]}, 0")
    e.lab("L_keepm")
    e("v_lshrrev_b32 v2, 4, v0"); e("v_and_b32 v3, 15, v0")
    e("v_and_b32 v8, 31, v0"); e("v_lshrrev_b32 v9, 5, v0")
    e("v_xor_b32 v10, v9, v3"); e("v_lshlrev_b32 v11, 8, v8"); e("v_lshl_add_u32 v7, v10, 4, v11")
    e(f"v_add_u32 v{KA}, s25, v7"); e(f"v_add_u32 v144, {QS}, v7")
    for B in (KA, 144):
        for d, x, o in ((1, 32, 0), (2, 64, 0), (4, 128, 0), (3, 32, 2), (5, 32, 4), (6, 64, 4), (7, 32, 6)): e(f"v_xor_b32 v{B+d}, {x}, v{B+o}")
    e("v_lshrrev_b32 v7, 2, v3"); e("v_lshl_add_u32 v13, v9, 2, v7")
    e("v_lshlrev_b32 v13, 8, v13")
    e("v_and_b32 v14, 1, v0"); e("v_lshl_add_u32 v13, v14, 3, v13")
    e("v_and_b32 v14, 1, v2"); e("v_lshlrev_b32 v14, 1, v14")
    e("v_bfe_u32 v15, v0, 1, 1"); e("v_add_u32 v14, v14, v15")
    e("v_xor_b32 v7, s20, v7")
    e("v_lshl_add_u32 v14, v7, 2, v14"); e("v_lshl_add_u32 v13, v14, 4, v13")
    e(f"v_add_u32 v{VA}, s25, v13"); e(f"v_xor_b32 v{VA+1}, 64, v{VA}"); e(f"v_xor_b32 v{VA+2}, 128, v{VA}"); e(f"v_xor_b32 v{VA+3}, 64, v{VA+2}")
    e("s_lshr_b32 s16, s20, 1"); e(f"s_mul_i32 s16, s16, {WREG}"); e("s_and_b32 s17, s20, 1"); e("s_lshl_b32 s17, s17, 12")
    e("s_add_u32 s16, s16, s17"); e(f"s_add_u32 s16, s16, {QS}")
    for j in range(4): e(f"v_add_u32 v{160+j}, s16, v{KD+j}")
    e(f"s_mov_b32 s18, {fbits(c):#x}"); e("s_mov_b32 s19, 0xffff0000")
    e(f"v_mov_b32 v{LS[0]}, 0"); e(f"v_mov_b32 v{LS[1]}, 0")
    e("v_add_u32 v120, s25, v4")
    for j in range(1, 4):
        e(f"s_xor_b32 s17, s20, {j}"); e(f"s_mul_i32 s17, s17, {WREG}"); e(f"v_add_u32 v{120+j}, s17, v4"); e(f"v_add_u32 v{124+j}, s17, v13")
    e("v_lshl_add_u32 v124, v9, 4, v11"); e("s_lshl_b32 s17, s20, 6"); e("v_add_u32 v124, s17, v124"); e("s_add_u32 s23, s24, 8192")
    for qh in range(2):
        for r in range(16): e(f"v_sub_f32 v{NM[qh]+r}, 0, v{MT[qh]}")
    stamp("addr")
    for u in rest0: dma(*u)
    if touch == "addr": dotouch()
    stamp("preQ")
    for j in range(4):
        e(f"s_waitcnt vmcnt({len(e.vm) - 1 - j})", ("wq", j))
        if j == 0: stamp("Qarr")
        for r in range(4):
            q = QT + 4 * j + r
            e(f"v_lshlrev_b32 v{164+2*r}, 16, v{q}"); e(f"v_and_b32 v{165+2*r}, s19, v{q}")
        for r in range(4): e(f"v_pk_mul_f32 v[{164+2*r}:{165+2*r}], v[{164+2*r}:{165+2*r}], s[18:19] op_sel_hi:[1,0]")
        for r in range(4): e(f"v_cvt_pk_bf16_f32 v{QT+4*j+r}, v{164+2*r}, v{165+2*r}")
        e.lgop(f"ds_write_b128 v{160+j}, v[{QT+4*j}:{QT+4*j+3}] offset:{1024*j}", "Qw")
        pop(1)
    e("s_waitcnt lgkmcnt(0)"); e("s_barrier")
    stamp("Qbar")
    def kread(j, s): return ("lg", f"ds_read_b128 a[{aK(s)}:{aK(s)+3}], v{KA+s} offset:{slot('K',j)*8192}", ("Kr", j, s))
    def vread(j, i, u):
        db, ks = i % 4, i // 4; r = aV(db, ks) + 2 * u
        return ("lg", f"ds_read_b64_tr_b16 a[{r}:{r+1}], v{VA+db} offset:{slot('V',j)*8192 + ks*4096 + u*2048}", ("Vr", j, i))
    def qk(qh, s, first_c):
        cs = first_c if s == 0 else f"v[{S[qh]}:{S[qh]+15}]"
        return f"v_mfma_f32_32x32x16_bf16 v[{S[qh]}:{S[qh]+15}], a[{aK(s)}:{aK(s)+3}], a[{aQ(qh,s)}:{aQ(qh,s)+3}], {cs}"
    def pv(qh, i, zero=False):
        ks, db = i // 4, i % 4; o = oreg(qh, db)
        return f"v_mfma_f32_32x32x16_bf16 {o}, a[{aV(db,ks)}:{aV(db,ks)+3}], v[{P[qh]+4*ks}:{P[qh]+4*ks+3}], {'0' if zero and ks == 0 else o}"
    for s in range(8): e.lgop(f"ds_read_b128 a[{aQ(0,s)}:{aQ(0,s)+3}], v{144+s}", ("Qr", 0, s))
    pop(4); wvm("K", 0)
    stamp("K0arr")
    for s in range(8): emit(kread(0, s))
    pop(2)
    for s in range(8):
        e.lgop(f"ds_read_b128 a[{aQ(1,s)}:{aQ(1,s)+3}], v{144+s} offset:{WREG}", ("Qr", 1, s))
        wlg(("Kr", 0, s)); e(qk(0, s, f"v[{NM[0]}:{NM[0]+15}]")); pop(1)
    def softmax(qh):
        out = []
        for r in range(16):
            g = [("v", f"v_exp_f32 v{S[qh]+r}, v{S[qh]+r}")]
            if light:
                if r >= 2 and r % 2 == 0: g += [("v", f"v_add_f32 v{LS[qh]}, v{LS[qh]}, v{S[qh]+r-2}"), ("v", f"v_add_f32 v{LS[qh]}, v{LS[qh]}, v{S[qh]+r-1}")]
            elif r >= 1: g.append(("v", f"v_add_f32 v{LS[qh]}, v{LS[qh]}, v{S[qh]+r-1}"))
            if r >= 2 and r % 2 == 0: g.append(("v", f"v_cvt_pk_bf16_f32 v{P[qh]+r//2-1}, v{S[qh]+r-2}, v{S[qh]+r-1}"))
            out.append(g)
        tail = [("v", f"v_add_f32 v{LS[qh]}, v{LS[qh]}, v{S[qh]+15}"), ("v", f"v_cvt_pk_bf16_f32 v{P[qh]+7}, v{S[qh]+14}, v{S[qh]+15}")]
        if light: tail.insert(0, ("v", f"v_add_f32 v{LS[qh]}, v{LS[qh]}, v{S[qh]+14}"))
        return out, tail
    sm, tail = softmax(0)
    for s in range(8):
        e(e.wlg(("Qr", 1, s))); e(qk(1, s, f"v[{NM[1]}:{NM[1]+15}]")); pop(1)
        if s >= 2:
            for it in sm.pop(0) + sm.pop(0): emit(it)
    stamp("qk0")
    e("s_barrier")
    if sched is None: info["qfree"] = npt[0]
    pop(9); wvm("K", 1)
    for s in range(8): emit(kread(1, s))
    for g in sm:
        for it in g: emit(it)
        pop(1)
    e("s_nop 0")
    for it in tail: emit(it)
    if sched is None: info["loop0"] = npt[0]
    fs = [k for k in range(NS) if k != slot("V", 7)]
    ch = lambda q: fs[q // 8] * 8192 + (q % 8) * 1024
    def owrite(qh, j, i): return ("lg", f"ds_write_b128 v120, {oreg(qh,j,4*i,4)} offset:{ch((qh*3+j-1)*4+i)}", "Ow")
    def pwrite(qh, ks): return ("lg", f"ds_write_b128 v120, v[{P[qh]+4*ks}:{P[qh]+4*ks+3}] offset:{ch(24+2*qh+ks)}", "Ow")
    ew = []
    def wr(g):
        for _ in range(ewat.count(g)): emit(ew.pop(0))
    for t in range(7):
        stamp(f"it{t}")
        sm1, tail1 = softmax(1); sm0, tail0 = softmax(0)
        vlate = t == 0 or vg1
        ewat = []
        if t == 6:
            ew = [owrite(0, j, i) for j in range(1, 4) for i in range(4)] + [pwrite(0, 0)] + [owrite(1, j, i) for j in range(1, 4) for i in range(4)]
            ewat = list(ewat6); assert len(ewat) >= 13
        order = [1, 5, 2, 6, 3, 7, 0, 4] if t == 6 else list(range(8))
        if vgl: VG = vgl[t]
        for s in range(8):
            if s == 0: wlg(("Kr", t + 1, 7 if kg0 < 2 else 3))
            if s == 2 and kg0 >= 2: wlg(("Kr", t + 1, 7))
            e(qk(0, s, f"v[{NM[0]}:{NM[0]+15}]"))
            if early and not (vlate and s == VG): pt()
            for it in sm1[s]: emit(it)
            if vlate and s == VG: wvm("V", t)
            if vlate and s >= VG:
                n = 8 - VG
                for i in range((s - VG) * 8 // n, (s - VG + 1) * 8 // n): emit(vread(t, order[i], 0)); emit(vread(t, order[i], 1))
            if not (early and not (vlate and s == VG)): pt()
        for n, i in enumerate(order):
            if vlate:
                if n == 0: e(e.wlg(("Vr", t, order[wst])))
                if n == wst + 1: e(e.wlg(("Vr", t, order[7]))); done("V", t)
            elif n == 0: wlg(("Vr", t, 7))
            e(pv(0, i, t == 0))
            if early: pt()
            for it in sm1[8 + n]: emit(it)
            wr(8 + n)
            if not early: pt()
        if t == 6: stamp("6G3")
        if t + 2 < 8 and not kg4: wvm("K", t + 2)
        for it in tail1: emit(it)
        for s in range(8):
            e(qk(1, s, f"v[{NM[1]}:{NM[1]+15}]"))
            if early: pt()
            for it in sm0[s]: emit(it)
            if t + 2 < 8 and not kg4: emit(kread(t + 2, s))
            wr(16 + s)
            if not early: pt()
        rdv = t < 6 and not vg1
        if rdv: wvm("V", t + 1)
        for n, i in enumerate(order):
            if t + 2 < 8 and kg4 and n == kg0: wvm("K", t + 2)
            e(pv(1, i, t == 0))
            if early: pt()
            for it in sm0[8 + n]: emit(it)
            if rdv: emit(vread(t + 1, i, 0)); emit(vread(t + 1, i, 1))
            if t + 2 < 8 and kg4 and 0 <= n - kg0 < 4: emit(kread(t + 2, 2 * (n - kg0))); emit(kread(t + 2, 2 * (n - kg0) + 1))
            wr(24 + n)
            if not early: pt()
        e("s_nop 0")
        for it in tail0: emit(it)
    stamp("it7")
    sm1, tail1 = softmax(1)
    ML = 16; G = 52; RB = [128, 176]
    aP = lambda qh, j, ks: [0, 8, 64, 72, 192, 200][qh * 3 + j - 1] + 4 * ks
    def v7(j):
        return [("lg", f"ds_read_b64_tr_b16 a[{aV(j,ks)+2*u}:{aV(j,ks)+2*u+1}], v{VA if j == 0 else 124+j} offset:{slot('V',7)*8192 + ks*4096 + u*2048}", ("V7", j))
                for ks in range(2) for u in range(2)]
    def rdpo(qh, j):
        o = [("lg", f"ds_read_b128 a[{aP(qh,j,ks)}:{aP(qh,j,ks)+3}], v{120+j} offset:{ch(24+2*qh+ks)}", ("Or", qh, j)) for ks in range(2)]
        for i in range(4):
            b = RB[qh] + (j - 1) * 16 + 4 * i
            o.append(("lg", f"ds_read_b128 v[{b}:{b+3}], v{120+j} offset:{ch((qh*3+j-1)*4+i)}", ("Or", qh, j)))
        return o
    def mf(qh, j, ks):
        b = RB[qh] + (j - 1) * 16
        e(f"v_mfma_f32_32x32x16_bf16 v[{b}:{b+15}], a[{aV(j,ks)}:{aV(j,ks)+3}], a[{aP(qh,j,ks)}:{aP(qh,j,ks)+3}], v[{b}:{b+15}]")
    def gcalc(qh):
        n = [ML + 4 * j + 2 * qh for j in range(4)]; t = 48 + 2 * qh
        o = [f"v_min3_f32 v{t}, v{n[0]}, v{n[1]}, v{n[2]}", f"v_min_f32 v{t}, v{t}, v{n[3]}"]
        o += [f"v_sub_f32 v{G+4*qh+j}, v{t}, v{n[j]}" for j in range(4)]
        o += [f"v_exp_f32 v{G+4*qh+j}, v{G+4*qh+j}" for j in range(4)]
        o += [f"v_mul_f32 v{t+1}, v{G+4*qh}, v{n[0]+1}"] + [f"v_fma_f32 v{t+1}, v{G+4*qh+j}, v{n[j]+1}, v{t+1}" for j in range(1, 4)]
        o += [f"v_rcp_f32 v{t+1}, v{t+1}", "s_nop 0"] + [f"v_mul_f32 v{G+4*qh+j}, v{G+4*qh+j}, v{t+1}" for j in range(4)]
        return o
    def comb(qh, j, lo=0, hi=16):
        r = G + 4 * qh + j; g = f"v[{r & ~1}:{(r & ~1)+1}]"; s = r & 1; o = []
        for x in range(lo, hi, 2):
            d = OV[qh] + x; b = RB[qh] + (j - 1) * 16 + x
            o.append(f"v_pk_mul_f32 v[{d}:{d+1}], v[{d}:{d+1}], {g} op_sel:[0,{s}] op_sel_hi:[1,{s}]" if j == 0 else
                     f"v_pk_fma_f32 v[{d}:{d+1}], v[{b}:{b+1}], {g}, v[{d}:{d+1}] op_sel:[0,{s},0] op_sel_hi:[1,{s},1]")
        return o
    def fin(qh, k):
        cb = 32 + 8 * qh + 4 * k; o = OV[qh] + 8 * k
        return [f"v_cvt_pk_bf16_f32 v{cb+x}, v{o+2*x}, v{o+2*x+1}" for x in (0, 2, 1, 3)] + ["s_nop 0",
               f"v_permlane32_swap_b32 v{cb}, v{cb+2}", f"v_permlane32_swap_b32 v{cb+1}, v{cb+3}",
               f"buffer_store_dwordx4 v[{cb}:{cb+3}], v124, s[36:39], s{24-qh} offen offset:{k*32} {oflags}"]
    def run(L):
        for x in L: emit(x) if isinstance(x, tuple) else e(x)
    def sm(*rs):
        for r in rs: run(sm1[r])
    def w(n):
        for _ in range(n):
            if ew: emit(ew.pop(0))
    g0 = gcalc(0); g1 = gcalc(1)
    e(f"v_mov_b32 v60, v{LS[0]}"); emit(pwrite(0, 1)); e(f"v_mov_b32 v{ML}, v{NM[0]}"); e(f"v_mov_b32 v{ML+2}, v{NM[1]}")
    e(f"v_permlane32_swap_b32 v60, v{LS[0]}"); e(f"v_add_f32 v{ML+1}, v60, v{LS[0]}")
    e.lgop(f"ds_write_b128 v120, v[{ML}:{ML+3}] offset:{ch(28)}", "OwA")
    pt()
    assert not PT and len(e.vm) == 4 + 128, (PT.keys(), len(e.vm))
    wvm("V", 7); run(v7(0))
    sm(*range(0, preA))
    e(e.wlg("OwA")); e("s_barrier"); stamp("barA")
    for j in range(1, 4): e.lgop(f"ds_read_b128 v[{ML+4*j}:{ML+3+4*j}], v{120+j} offset:{ch(28)}", "ml")
    run(v7(1)); run(rdpo(0, 1))
    rs = list(range(preA, 16))
    def smn(n):
        for _ in range(n):
            if rs: sm(rs.pop(0))
    e(e.wlg(("V7", 0))); e(pv(0, 0)); run(v7(2)); smn(1); e(pv(0, 4)); run(rdpo(0, 2)); smn(2)
    e(e.wlg(("Or", 0, 1))); mf(0, 1, 0); run(v7(3)); smn(1); mf(0, 1, 1); run(rdpo(0, 3)); smn(2)
    e(e.wlg(("Or", 0, 2))); mf(0, 2, 0); smn(1); w(1); mf(0, 2, 1); smn(1); w(1); smn(1)
    e(e.wlg(("Or", 0, 3))); mf(0, 3, 0); w(1); smn(1); mf(0, 3, 1); w(1)
    while rs: smn(1); w(1)
    e("s_nop 0"); run(tail1)
    e(f"v_mov_b32 v61, v{LS[1]}"); emit(pwrite(1, 0)); e(pv(1, 0)); emit(pwrite(1, 1))
    e(f"v_permlane32_swap_b32 v61, v{LS[1]}"); e(f"v_add_f32 v{ML+3}, v61, v{LS[1]}"); e(pv(1, 4))
    e.lgop(f"ds_write_b32 v120, v{ML+3} offset:{ch(28)+12}", "Ow")
    gg = g0[:10] + g1[:10] + g0[10:]
    while ew: w(1); run(gg[:5]); gg = gg[5:]
    run(gg)
    e(f"s_mov_b32 s17, {fbits(2.0**40):#x}"); e(f"s_mov_b32 s16, {fbits(2.0**-30):#x}")
    e(f"v_max3_u32 v60, v{ML+1}, v{ML+5}, v{ML+9}"); e(f"v_max_u32 v60, v60, v{ML+13}")
    if precomb: run(comb(0, 0)); run(comb(0, 1))
    stamp("loopend")
    e("s_waitcnt lgkmcnt(0)"); stamp("ewr"); e("s_barrier"); stamp("ebar")
    run(rdpo(1, 1))
    for j in range(1, 4): e.lgop(f"ds_read_b32 v{ML+3+4*j}, v{120+j} offset:{ch(28)+12}", "ml")
    run(rdpo(1, 2))
    if not precomb: run(comb(0, 0)); run(comb(0, 1))
    run(comb(0, 2)); run(comb(0, 3))
    f0 = fin(0, 0); f1 = fin(0, 1)
    sc = [f"v_mul_f32 v{OV[1]+x}, v{OV[1]+x}, v{G+4}" for x in range(16)]
    e(e.wlg(("Or", 1, 1))); mf(1, 1, 0); run(rdpo(1, 3)); mf(1, 1, 1); run(f0[:4] + f1[:4] + f0[5:])
    e(e.wlg(("Or", 1, 2))); mf(1, 2, 0); run(f1[5:]); run(g1[10:15]); mf(1, 2, 1); run(g1[16:])
    e(f"v_max3_u32 v61, v{ML+3}, v{ML+7}, v{ML+11}"); e(f"v_max_u32 v61, v61, v{ML+15}")
    e("v_max_u32 v62, v60, v61"); e("v_min_u32 v63, v60, v61")
    e("v_cmp_le_u32 vcc, s17, v62"); e("v_cmp_gt_u32 s[4:5], s16, v63")
    e(e.wlg(("Or", 1, 3))); mf(1, 3, 0); run(sc[:6]); mf(1, 3, 1)
    e("s_or_b64 vcc, vcc, s[4:5]"); e("s_cmp_eq_u32 s40, 0"); e("s_cselect_b64 vcc, vcc, 0"); run(sc[6:]); e("s_cbranch_vccnz L_slow")
    stamp("chk")
    f0 = fin(1, 0); f1 = fin(1, 1)
    run(comb(1, 1, 0, 8)); run(comb(1, 2, 0, 8)); run(comb(1, 3, 0, 8)); run(f0[:4]); run(comb(1, 1, 8, 16)); run(f0[5:])
    run(comb(1, 2, 8, 16)); run(comb(1, 3, 8, 16)); run(f1)
    if spin:
        stamp("stores"); e("s_waitcnt vmcnt(0)"); stamp("end"); e("s_waitcnt lgkmcnt(0)")
        a, b = names.index(spin[0]), names.index(spin[1])
        e("s_cmp_eq_u32 s2, 133"); e("s_cbranch_scc0 L_end"); e("s_cmp_eq_u32 s20, 0"); e("s_cbranch_scc0 L_end")
        e(f"s_sub_u32 s4, s{SB+2*b}, s{SB+2*a}"); e("s_lshl_b32 s4, s4, 2"); e("s_min_u32 s4, s4, 0x40000")
        k = names.index("end")
        e.lab("L_spin"); e("s_sleep 1"); e("s_memtime s[6:7]"); e("s_waitcnt lgkmcnt(0)")
        e(f"s_sub_u32 s6, s6, s{SB+2*k}"); e("s_cmp_lt_u32 s6, s4"); e("s_cbranch_scc1 L_spin")
    elif dbg:
        stamp("stores"); e("s_waitcnt vmcnt(0)"); stamp("end")
        e("s_memrealtime s[64:65]")
        e("s_load_dwordx2 s[4:5], s[0:1], 40"); e("s_waitcnt lgkmcnt(0)")
        e("s_mov_b32 s6, 0x100000"); e("s_mov_b32 s7, 0x20000")
        e("s_lshl_b32 s8, s2, 2"); e("s_add_u32 s8, s8, s20"); e("s_lshl_b32 s8, s8, 7")
        e("v_mov_b32 v16, s62"); e("v_mov_b32 v17, s64"); e("v_mov_b32 v18, 0"); e("v_mov_b32 v19, 0")
        for k in range(len(names)): e(f"v_mov_b32 v{20+k}, s{SB+2*k}")
        e("v_mov_b32 v1, 0"); e("s_mov_b64 exec, 1")
        for j in range(0, 4 + len(names), 4): e(f"buffer_store_dwordx4 v[{16+j}:{19+j}], v1, s[4:7], s8 offen offset:{j*4}")
        e("s_waitcnt vmcnt(0)")
        open(path + ".names", "w").write(" ".join(names))
    assert len(names) <= 18, names
    e.lab("L_end")
    e("s_endpgm")
    e.lab("L_slow")
    e("s_waitcnt lgkmcnt(0)"); e("s_barrier")
    e("s_mov_b32 s40, 1"); e("s_mov_b32 s16, s26"); e("s_mov_b32 s17, 0")
    e(f"v_mov_b32 v{MT[0]}, 0xff800000"); e(f"v_mov_b32 v{MT[1]}, 0xff800000")
    e.lab("L_slow_loop")
    e("s_mov_b32 m0, s25"); e("s_nop 0")
    for i in range(8):
        if i == 4: e("s_add_u32 m0, s25, 4096"); e("s_add_u32 s16, s16, 4096")
        e(f"buffer_load_dwordx4 v{KD+i%4}, s[28:31], s16 offen offset:{(i%4)*1024} lds")
    e(f"s_add_u32 s16, s16, {32768-4096}")
    e("s_waitcnt vmcnt(0)")
    for s in range(8): e(f"ds_read_b128 a[{aK(s)}:{aK(s)+3}], v{KA+s}")
    e("s_waitcnt lgkmcnt(0)")
    for qh in range(2):
        for s in range(8): e(qk(qh, s, "0"))
    e("s_nop 15")
    for qh in range(2):
        for r in range(0, 16, 2): e(f"v_max3_f32 v{MT[qh]}, v{S[qh]+r}, v{S[qh]+r+1}, v{MT[qh]}")
    e("s_add_u32 s17, s17, 1"); e("s_cmp_lt_u32 s17, 8"); e("s_cbranch_scc1 L_slow_loop")
    for qh in range(2):
        e(f"v_mov_b32 v16, v{MT[qh]}"); e("s_nop 1"); e(f"v_permlane32_swap_b32 v16, v{MT[qh]}"); e(f"v_max_f32 v{MT[qh]}, v16, v{MT[qh]}")
    e("s_barrier")
    e("s_branch L_restart")
    tailtxt = ['.section .rodata,"a"', ".p2align 6", f".amdhsa_kernel {KN}",
               "  .amdhsa_next_free_vgpr 512", "  .amdhsa_next_free_sgpr 102", "  .amdhsa_accum_offset 256",
               "  .amdhsa_group_segment_fixed_size 0", "  .amdhsa_kernarg_size 48", "  .amdhsa_user_sgpr_count 2",
               "  .amdhsa_user_sgpr_kernarg_segment_ptr 1", "  .amdhsa_system_sgpr_workgroup_id_x 1", ".end_amdhsa_kernel"]
    if path and touch:
        import subprocess, re
        for pg in (1, 2):
            open("_t.s", "w").write("\n".join(hdr + e.L + [f"L_pg{k}:" for k in range(pg, 3)] + tailtxt) + "\n")
            subprocess.check_call("clang -target amdgcn-amd-amdhsa -mcpu=gfx950 -c _t.s -o _t.o", shell=True)
            ad = [int(m, 16) for m in re.findall(r"// ([0-9A-F]{12}):", subprocess.check_output("llvm-objdump -d _t.o", shell=True).decode())]
            ad = [a - pad for a in ad if a >= pad]
            idx = [i for i, x in enumerate(e.L) if x.startswith(" ")]; assert len(idx) == len(ad)
            k = idx[min(i for i, a in enumerate(ad) if a >= 4096 * pg and e.L[idx[i]].split()[0].startswith("v_mfma"))]
            e.L[k:k] = [f"L_pg{pg}:", "    s_cbranch_scc1 L_back"]
    if path: open(path, "w").write("\n".join(hdr + e.L + tailtxt) + "\n")
    return e.P

def parse(s): return [(u[0], int(u[1]), "ab".index(u[2]), int(u[4:])) for u in s.split()]
def both(name, sched, **kw):
    for dbg in (False, True, "lite"):
        assert gen(f"mb/{name}{ {False: '', True: '_dbg', 'lite': '_l'}[dbg]}.s", parse(sched), dbg=dbg, **kw) is not None
```

```python
from g5 import *
kw=dict(vg1=True, kg4=True, stride=2, early=True)
s4="K1a@0 K0a@0 K0b@1 V0a@5 K2a@9 K1b@15 V0b@23 K2b@27 V1a@31 K3a@37 V1b@41 K4a@49 V2a@57 K3b@65 V2b@73 K4b@81 V3a@89 K5a@97 V3b@105 K6a@113 V4a@121 K5b@129 V4b@137 K6b@145 V5a@153 V7a@161 V5b@177 K7a@185 K7b@193 V6a@207 V6b@215 V7b@225"
s6="K1a@0 K0a@0 K0b@1 V0a@5 K2a@12 V0b@16 K1b@20 K2b@24 V1a@28 K3a@32 V1b@37 K4a@46 V2a@54 K3b@66 V2b@74 K4b@82 V3a@90 K5a@100 V3b@108 V4a@116 K6a@124 K5b@132 V4b@140 K6b@148 V5a@156 V7a@164 V5b@173 V6a@181 K7a@189 K7b@197 V6b@215 V7b@225"
if __name__ == "__main__":
    both("g5_a", s4, **kw); both("g5_b", s6, **kw); both("g5_c", s4, precomb=True, preA=6, **kw)
```

```python
import g4, g5
from mk5 import s4, s6, kw
g4.both("g4_bb", s4, precomb=True, preA=6, vgl=[2,2,2,2,2,2,3], wst=1, **kw)
g5.both("g5_bb", s4, precomb=True, preA=6, vgl=[2,2,2,2,2,2,3], wst=1, **kw)
g4.both("g4_b4", s4, precomb=True, preA=6, **kw)
```

```python
import sys, math, struct
KN = "standalone__gqa_softmax__near_ridge_kernel"
def fbits(x): return struct.unpack("<I", struct.pack("<f", x))[0]
class Em:
    def __init__(s): s.L = []; s.vm = []; s.lg = []; s.P = []
    def __call__(s, x, meta=None): s.L.append("    " + x); s.P.append((x, meta))
    def lab(s, x): s.L.append(x + ":")
    def vmop(s, x, tag, meta=None): s(x, meta); s.vm.append(tag)
    def lgop(s, x, tag): s(x); s.lg.append(tag)
    def _cnt(s, lst, tag):
        idx = max(i for i, t in enumerate(lst) if t == tag)
        return len(lst) - 1 - idx
    def wvm(s, tag): return f"s_waitcnt vmcnt({min(63, s._cnt(s.vm, tag))})"
    def wlg(s, tag): return f"s_waitcnt lgkmcnt({min(15, s._cnt(s.lg, tag))})"

SIGA = [0, 2, 1, 4, 3, 6, 5, 7]; SIGB = [1, 0, 3, 2, 5, 4, 7, 6]
def gen(path, sched=None, flags="", sg="021436570 021436571 103254760 103254761", latev=True, vg1=False, kg4=False,
        dbg=False, spin=None, oflags="", info=None, stride=1, early=False, light=False, p0max=12, kg0=0, vgl=None, pad=0xd00, touch=None, p0a=999, wst=3, preA=4, precomb=False, pf=(), pff='', grot=0,
        ewat6=(11, 12, 13, 15, 16, 17, 19, 20, 21, 23, 24, 25, 27, 28, 29, 30, 31)):
    if sched is not None and info is None:
        info = {}; gen(None, None, latev=latev, vg1=vg1, kg4=kg4, info=info, early=early, light=light, wst=wst, kg0=kg0, vgl=vgl)
    e = Em(); NS = 5; VG = 0 if vg1 is True else (3 if not vg1 else vg1)
    S = [16, 32]; NM = [48, 64]; P = [80, 88]
    KA = 96; VA = 104; KD = 108; VD = 112; LS = [113, 114]; MT = [118, 119]; QT = 128
    OV = [224, 240]
    def oreg(qh, j, lo=0, n=16):
        if j == 0: return f"v[{OV[qh]+lo}:{OV[qh]+lo+n-1}]"
        o = (qh * 4 + j) * 16; return f"a[{o+lo}:{o+lo+n-1}]"
    aQ = lambda qh, s: 128 + (qh * 8 + s) * 4
    aK = lambda s: 192 + s * 4
    aV = lambda db, ks: 224 + (db * 2 + ks) * 4
    WREG = NS * 8192; QS = (NS - 1) * 8192
    c = math.log2(math.e) / math.sqrt(128.0)
    hdr = ["; GQA attention (B8 Hq32 Hkv8 Sq64 Sk1024 D128, bf16), generated by gen/g4.py",
           f"; @launch grid=(256,1,1) block=(256,1,1) lds={4*WREG}",
           '.amdgcn_target "amdgcn-amd-amdhsa--gfx950"', ".text", f".globl {KN}", ".p2align 12", f".fill {pad//4}, 4, 0xbf810000", ".p2align 8", f".type {KN},@function", f"{KN}:"]
    names = []
    SB = 66
    def stamp(name):
        e.P.append(("", ("stamp", name)))
        if dbg and (dbg is True or name == "end") and name not in ("ewr", "6G3", "chk", "stores", "loopend", "it3", "it5"): k = len(names); e(f"s_memtime s[{SB+2*k}:{SB+1+2*k}]"); names.append(name)
    e("s_load_dwordx2 s[12:13], s[0:1], 0"); e("s_load_dwordx2 s[28:29], s[0:1], 8")
    e("s_load_dwordx2 s[32:33], s[0:1], 16"); e("s_load_dwordx2 s[36:37], s[0:1], 24")
    e("s_lshr_b32 s3, s2, 8"); e("s_cbranch_scc1 L_end")
    if dbg: e("s_memrealtime s[62:63]")
    stamp("start")
    e("v_lshrrev_b32 v1, 6, v0"); e("v_and_b32 v0, 63, v0"); e("v_readfirstlane_b32 s20, v1")
    e("s_and_b32 s21, s2, 7"); e("s_lshl_b32 s21, s21, 5"); e("s_lshr_b32 s22, s2, 3"); e("s_add_u32 s21, s21, s22")
    e("v_lshlrev_b32 v4, 4, v0"); e("v_and_b32 v5, 48, v0"); e(f"v_xor_b32 v{KD}, v4, v5"); e("v_lshlrev_b32 v6, 2, v5")
    e(f"v_xor_b32 v{KD+1}, 64, v{KD}"); e(f"v_xor_b32 v{KD+2}, 128, v{KD}"); e(f"v_xor_b32 v{VD}, v4, v6"); e(f"v_xor_b32 v{KD+3}, 64, v{KD+2}")
    e("s_lshl_b32 s26, s20, 13"); e("s_mul_i32 s25, s26, 5"); e("s_lshl2_add_u32 s27, s21, s20"); e("s_lshl_b32 s27, s27, 12")
    e("s_andn2_b32 s23, s21, 3"); e("s_lshl_b32 s23, s23, 16"); e("s_add_u32 s26, s26, s23")
    pk = lambda x: sum(int(v) << (4 * i) for i, v in enumerate(x[:8])) | (int(x[8]) << 3)
    sgs = [pk(x) for x in sg.split()]
    e("s_bitcmp1_b32 s2, 3"); e(f"s_mov_b32 s44, {sgs[0]:#x}"); e(f"s_cselect_b32 s44, {sgs[1]:#x}, s44")
    if sgs[2:] != sgs[:2]:
        e(f"s_mov_b32 s45, {sgs[2]:#x}"); e(f"s_cselect_b32 s45, {sgs[3]:#x}, s45")
        e("s_bitcmp1_b32 s2, 4"); e("s_cselect_b32 s44, s45, s44")
    if grot:
        if grot == 1: e("s_bfe_u32 s4, s21, 0x30002")
        elif grot == 2: e("s_and_b32 s4, s2, 7")
        elif grot == 3: e("s_lshr_b32 s4, s21, 2"); e("s_xor_b32 s4, s4, s2"); e("s_and_b32 s4, s4, 7")
        elif grot == 4: e("s_bfe_u32 s4, s21, 0x20002"); e("s_lshl_b32 s4, s4, 1")
        elif grot == 5: e("s_lshr_b32 s4, s21, 2"); e("s_add_u32 s4, s4, s2"); e("s_and_b32 s4, s4, 7")
        elif grot == 6: e("s_bfe_u32 s4, s21, 0x30003")
        elif grot == 7: e("s_bfe_u32 s4, s21, 0x30004")
        elif grot == 8: e("s_brev_b32 s4, s21"); e("s_bfe_u32 s4, s4, 0x3001b")
        elif grot == 9: e("s_brev_b32 s4, s21"); e("s_lshr_b32 s4, s4, 27"); e("s_xor_b32 s4, s4, s2"); e("s_and_b32 s4, s4, 7")
        elif grot == 10: e("s_and_b32 s4, s21, 4")
        elif grot == 11: e("s_and_b32 s4, s2, 3"); e("s_lshl_b32 s4, s4, 1")
        elif grot == 12: e("s_lshr_b32 s4, s21, 2"); e("s_add_u32 s4, s4, s2"); e("s_and_b32 s4, s4, 3"); e("s_lshl_b32 s4, s4, 1")
        elif grot == 13: e("s_and_b32 s4, s2, 6")
        elif grot == 14: e("s_lshr_b32 s4, s21, 3"); e("s_add_u32 s4, s4, s2"); e("s_and_b32 s4, s4, 3"); e("s_lshl_b32 s4, s4, 1")
        e("s_mul_i32 s4, s4, 0x11111111"); e("s_xor_b32 s44, s44, s4")
    e("s_movk_i32 s3, 0x1000")
    e("s_and_b32 s41, s44, 8"); e("s_lshl_b32 s41, s41, 9")
    e("s_add_u32 s42, s25, s41"); e("s_xor_b32 s43, s42, s3")
    e("s_add_u32 s41, s41, s26")
    SO = 46
    made = set()
    def mkoff(j):
        if j in made: return
        made.add(j)
        e("s_and_b32 s45, s44, 7" if j == 0 else f"s_bfe_u32 s45, s44, {(3<<16)|(4*j):#x}")
        e(f"s_lshl_b32 s45, s45, 15"); e(f"s_add_u32 s{SO+j}, s45, s41"); e(f"s_xor_b32 s{SO+8+j}, s{SO+j}, s3")
    for u in (sched or [])[:min(3, (p0a + 3) // 4)]:
        if u[3] == 0: mkoff(u[1])
    e("s_lshl_b32 s14, 1, 22"); e("s_lshl_b32 s15, 1, 17"); e("s_lshl_b32 s30, 1, 24"); e("s_mov_b32 s31, s15")
    e("s_mov_b64 s[34:35], s[30:31]"); e("s_mov_b64 s[38:39], s[14:15]")
    e("s_mov_b32 s40, 0")
    def dotouch():
        e("s_bitcmp1_b32 s20, 1"); e("s_cbranch_scc1 L_pg2"); e("s_cmp_eq_u32 0, 0"); e("s_branch L_pg1"); e.lab("L_back")
    if touch == "start": dotouch()
    e("s_waitcnt lgkmcnt(0)")
    stamp("karg")
    e.lab("L_restart")
    for j in range(4):
        e.vmop(f"buffer_load_dwordx4 v[{QT+4*j}:{QT+4*j+3}], v4, s[12:15], s27 offen offset:{j*1024}", "Q", ("Q", 0, 0, j))
    slots = {}
    if sched is not None:
        freeat = [0, 0, 0, 0, info["qfree"]]; PT = {}; nxt = 0
        for kind, j, h, at in sched:
            at = max(at, nxt)
            if (kind, j) not in slots:
                k = min(range(NS), key=lambda q: freeat[q]); at = max(at, freeat[k])
                slots[(kind, j)] = k; freeat[k] = info["done"].get((kind, j), 10**6)
            if at == 0 and len(PT.get(0, [])) >= p0max: at = 1
            st = 0 if at == 0 else (stride if at >= info["loop0"] else 1)
            for i in range(4): PT.setdefault(at + i * st, []).append((kind, j, h, i))
            nxt = at + 4 * st
            if at + 3 * st + 1 > info["need"][(kind, j)]: return None
    else:
        info["done"] = {}; info["need"] = {}
        PT = {0: [(kind, j, h, i) for kind in "KV" for j in range(8) for h in range(2) for i in range(4)]}
        slots = {(kind, j): 0 for kind in "KV" for j in range(8)}
    slot = lambda kind, j: slots[(kind, j)]
    def dma(kind, j, h, i):
        srd = "s[28:31]" if kind == "K" else "s[32:35]"
        if i == 0:
            x = f"s_add_u32 m0, s{42+h}, {slot(kind, j)*8192}" if slot(kind, j) else f"s_mov_b32 m0, s{42+h}"
            prev = e.L[-1].split()[0]
            if prev.startswith("v_") or prev.startswith("ds_"): e.L.insert(len(e.L) - 1, "    " + x)
            else: e(x, ("skip",)); e("s_nop 0", ("skip",))
        va = KD + i if kind == "K" else VD
        e.vmop(f"buffer_load_dwordx4 v{va}, {srd}, s{SO+8*h+j} offen offset:{i*1024} {flags} lds", (kind, j), (kind, j, h, i))
    npt = [0]
    def pt():
        e.P.append(("", ("pt", npt[0])))
        for u in PT.pop(npt[0], []): dma(*u)
        for n, (kind, base, mode, at) in enumerate(pf if sched is not None else ()):
            if at != npt[0]: continue
            srd = {"K": "s[28:31]", "V": "s[32:35]", "O": "s[36:39]"}[kind]
            e.vmop(f"buffer_load_dword v117, v{116 if mode == 'h' else 115}, {srd}, s{4+n} offen {pff}", "PF", ("skip",))
            if mode == "q64": e.vmop(f"buffer_load_dword v117, v115, {srd}, s{4+n} offen offset:64 {pff}", "PF", ("skip",))
        npt[0] += 1
    def wvm(kind, j):
        if sched is None: info["need"][(kind, j)] = npt[0]
        e(e.wvm((kind, j)), ("wvm", kind, j))
    def wlg(tag):
        e(e.wlg(tag))
        if sched is None and tag[0] in ("Kr", "Vr") and tag[2] == 7: info["done"][(tag[0][0], tag[1])] = npt[0]
    def done(kind, j):
        if sched is None: info["done"][(kind, j)] = npt[0]
    def emit(item):
        if item[0] == "vm": e.vmop(item[1], item[2], item[3])
        elif item[0] == "lg": e.lgop(item[1], item[2])
        else: e(item[1])
    def pop(n):
        for _ in range(n): pt()
    rest0 = PT[0][p0a:]; PT[0] = PT[0][:p0a]
    pop(1); stamp("iss0")
    for j in range(8): mkoff(j)
    if pf:
        e("v_lshlrev_b32 v115, 7, v0"); e("v_lshlrev_b32 v116, 6, v0")
        for n, (kind, base, mode, at) in enumerate(pf):
            if mode == "o":
                e("v_lshlrev_b32 v115, 28, v0"); e(f"s_lshl_b32 s{4+n}, s21, 14"); continue
            if mode == "t":
                if n == 0: e("v_lshrrev_b32 v116, 3, v0"); e("v_lshlrev_b32 v115, 15, v0"); e("v_lshl_or_b32 v115, v116, 28, v115")
                e(f"s_mov_b32 s{4+n}, s26"); continue
            if mode == "h":
                e("s_bfe_u32 s45, s21, 0x10001"); e("s_lshl_b32 s45, s45, 3"); e("s_and_b32 s11, s21, 1"); e("s_add_u32 s45, s45, s11")
                e(f"s_add_u32 s45, s45, {base*8}"); e("s_lshl_b32 s45, s45, 12")
            else:
                e("s_and_b32 s45, s21, 3"); e(f"s_add_u32 s45, s45, {base}"); e("s_lshl_b32 s45, s45, 15")
            e(f"s_add_u32 s{4+n}, s45, s26")
    e("s_lshl_b32 s24, s21, 14")
    e("s_cmp_eq_u32 s40, 0"); e("s_cbranch_scc0 L_keepm")
    e(f"v_mov_b32 v{MT[0]}, 0xff800000"); e(f"v_mov_b32 v{MT[1]}, v{MT[0]}")
    e.lab("L_keepm")
    e("v_lshrrev_b32 v2, 4, v0"); e("v_and_b32 v3, 15, v0")
    e("v_and_b32 v8, 31, v0"); e("v_lshrrev_b32 v9, 5, v0")
    e("v_xor_b32 v10, v9, v3"); e("v_lshlrev_b32 v11, 8, v8"); e("v_lshl_add_u32 v7, v10, 4, v11")
    e(f"v_add_u32 v{KA}, s25, v7"); e(f"v_add_u32 v144, {QS}, v7")
    for B in (KA, 144):
        for d, x, o in ((1, 32, 0), (2, 64, 0), (4, 128, 0), (3, 32, 2), (5, 32, 4), (6, 64, 4), (7, 32, 6)): e(f"v_xor_b32 v{B+d}, {x}, v{B+o}")
    e("v_lshrrev_b32 v7, 2, v3"); e("v_lshl_add_u32 v13, v9, 2, v7")
    e("v_lshlrev_b32 v13, 8, v13")
    e("v_and_b32 v14, 1, v0"); e("v_lshl_add_u32 v13, v14, 3, v13")
    e("v_and_b32 v14, 1, v2"); e("v_lshlrev_b32 v14, 1, v14")
    e("v_bfe_u32 v15, v0, 1, 1"); e("v_add_u32 v14, v14, v15")
    e("v_xor_b32 v7, s20, v7")
    e("v_lshl_add_u32 v14, v7, 2, v14"); e("v_lshl_add_u32 v13, v14, 4, v13")
    e(f"v_add_u32 v{VA}, s25, v13"); e(f"v_xor_b32 v{VA+1}, 64, v{VA}"); e(f"v_xor_b32 v{VA+2}, 128, v{VA}"); e(f"v_xor_b32 v{VA+3}, 64, v{VA+2}")
    e("s_lshr_b32 s16, s20, 1"); e(f"s_mul_i32 s16, s16, {WREG}"); e("s_and_b32 s17, s20, 1"); e("s_lshl_b32 s17, s17, 12")
    e("s_add_u32 s16, s16, s17"); e(f"s_add_u32 s16, s16, {QS}")
    for j in range(4): e(f"v_add_u32 v{160+j}, s16, v{KD+j}")
    e(f"s_mov_b32 s18, {fbits(c):#x}"); e("s_mov_b32 s19, 0xffff0000")
    e(f"v_mov_b32 v{LS[0]}, 0"); e(f"v_mov_b32 v{LS[1]}, 0")
    e("v_add_u32 v120, s25, v4")
    for j in range(1, 4):
        e(f"s_xor_b32 s17, s20, {j}"); e(f"s_mul_i32 s17, s17, {WREG}"); e(f"v_add_u32 v{120+j}, s17, v4"); e(f"v_add_u32 v{124+j}, s17, v13")
    e("v_lshl_add_u32 v124, v9, 4, v11"); e("s_lshl_b32 s17, s20, 6"); e("v_add_u32 v124, s17, v124"); e("s_add_u32 s23, s24, 8192")
    stamp("addr")
    for u in rest0: dma(*u)
    if touch == "addr": dotouch()
    stamp("preQ")
    for j in range(4):
        e(f"s_waitcnt vmcnt({len(e.vm) - 1 - j})", ("wq", j))
        if j == 0: stamp("Qarr")
        for r in range(4):
            q = QT + 4 * j + r
            e(f"v_lshlrev_b32 v{164+2*r}, 16, v{q}"); e(f"v_and_b32 v{165+2*r}, s19, v{q}")
        for r in range(4): e(f"v_pk_mul_f32 v[{164+2*r}:{165+2*r}], v[{164+2*r}:{165+2*r}], s[18:19] op_sel_hi:[1,0]")
        for r in range(4): e(f"v_cvt_pk_bf16_f32 v{QT+4*j+r}, v{164+2*r}, v{165+2*r}")
        e.lgop(f"ds_write_b128 v{160+j}, v[{QT+4*j}:{QT+4*j+3}] offset:{1024*j}", "Qw")
        pop(1)
    e("s_waitcnt lgkmcnt(0)"); e("s_barrier")
    stamp("Qbar")
    def kread(j, s): return ("lg", f"ds_read_b128 a[{aK(s)}:{aK(s)+3}], v{KA+s} offset:{slot('K',j)*8192}", ("Kr", j, s))
    def vread(j, i, u):
        db, ks = i % 4, i // 4; r = aV(db, ks) + 2 * u
        return ("lg", f"ds_read_b64_tr_b16 a[{r}:{r+1}], v{VA+db} offset:{slot('V',j)*8192 + ks*4096 + u*2048}", ("Vr", j, i))
    def qk(qh, s, first_c):
        cs = first_c if s == 0 else f"v[{S[qh]}:{S[qh]+15}]"
        return f"v_mfma_f32_32x32x16_bf16 v[{S[qh]}:{S[qh]+15}], a[{aK(s)}:{aK(s)+3}], a[{aQ(qh,s)}:{aQ(qh,s)+3}], {cs}"
    def pv(qh, i, zero=False):
        ks, db = i // 4, i % 4; o = oreg(qh, db)
        return f"v_mfma_f32_32x32x16_bf16 {o}, a[{aV(db,ks)}:{aV(db,ks)+3}], v[{P[qh]+4*ks}:{P[qh]+4*ks+3}], {'0' if zero and ks == 0 else o}"
    for s in range(8): e.lgop(f"ds_read_b128 a[{aQ(0,s)}:{aQ(0,s)+3}], v{144+s}", ("Qr", 0, s))
    pop(4); wvm("K", 0)
    stamp("K0arr")
    for s in range(8): emit(kread(0, s))
    pop(2)
    for s in range(8):
        e.lgop(f"ds_read_b128 a[{aQ(1,s)}:{aQ(1,s)+3}], v{144+s} offset:{WREG}", ("Qr", 1, s))
        wlg(("Kr", 0, s)); e(qk(0, s, "0")); pop(1)
    def rowmax(qh, t0):
        o = [f"v_max3_f32 v{t0}, v{S[qh]}, v{S[qh]+1}, v{MT[qh]}", f"v_max3_f32 v{t0+1}, v{S[qh]+2}, v{S[qh]+3}, v{S[qh]+4}"]
        for r in range(5, 15, 2): o.append(f"v_max3_f32 v{t0+(r//2)%2}, v{S[qh]+r}, v{S[qh]+r+1}, v{t0+(r//2)%2}")
        o += [f"v_max3_f32 v{t0}, v{t0}, v{t0+1}, v{S[qh]+15}", f"v_mov_b32 v{t0+1}, v{t0}", "s_nop 1",
              f"v_permlane32_swap_b32 v{t0}, v{t0+1}", f"v_max_f32 v{t0}, v{t0}, v{t0+1}"]
        o += [f"v_sub_f32 v{S[qh]+r}, v{S[qh]+r}, v{t0}" for r in range(16)]
        o2 = [f"v_sub_f32 v{NM[qh]+r}, 0, v{t0}" for r in range(16)]
        return o, o2
    m0a, m0b = rowmax(0, 164); m1a, m1b = rowmax(1, 166)
    kw = False
    for s in range(8):
        e(e.wlg(("Qr", 1, s))); e(qk(1, s, "0"))
        if s >= 2:
            for _ in range(5):
                if m0a: e(m0a.pop(0))
        else: pop(1)
    stamp("qk0")
    e("s_barrier")
    if sched is None: info["qfree"] = npt[0]
    for x in m0a: e(x)
    def softmax(qh):
        out = []
        for r in range(16):
            g = [("v", f"v_exp_f32 v{S[qh]+r}, v{S[qh]+r}")]
            if light:
                if r >= 2 and r % 2 == 0: g += [("v", f"v_add_f32 v{LS[qh]}, v{LS[qh]}, v{S[qh]+r-2}"), ("v", f"v_add_f32 v{LS[qh]}, v{LS[qh]}, v{S[qh]+r-1}")]
            elif r >= 1: g.append(("v", f"v_add_f32 v{LS[qh]}, v{LS[qh]}, v{S[qh]+r-1}"))
            if r >= 2 and r % 2 == 0: g.append(("v", f"v_cvt_pk_bf16_f32 v{P[qh]+r//2-1}, v{S[qh]+r-2}, v{S[qh]+r-1}"))
            out.append(g)
        tail = [("v", f"v_add_f32 v{LS[qh]}, v{LS[qh]}, v{S[qh]+15}"), ("v", f"v_cvt_pk_bf16_f32 v{P[qh]+7}, v{S[qh]+14}, v{S[qh]+15}")]
        if light: tail.insert(0, ("v", f"v_add_f32 v{LS[qh]}, v{LS[qh]}, v{S[qh]+14}"))
        return out, tail
    sm, tail = softmax(0)
    for r in range(16):
        for it in sm[r]: emit(it)
        e(m0b[r]); pop(1 if r % 2 else 0)
    for it in tail: emit(it)
    for i, x in enumerate(m1a):
        e(x)
        if i % 4 == 3: pop(1)
    wvm("K", 1)
    for s in range(8): emit(kread(1, s))
    for i, x in enumerate(m1b):
        e(x)
        if i % 4 == 3: pop(1)
    if sched is None: info["loop0"] = npt[0]
    fs = [k for k in range(NS) if k != slot("V", 7)]
    ch = lambda q: fs[q // 8] * 8192 + (q % 8) * 1024
    def owrite(qh, j, i): return ("lg", f"ds_write_b128 v120, {oreg(qh,j,4*i,4)} offset:{ch((qh*3+j-1)*4+i)}", "Ow")
    def pwrite(qh, ks): return ("lg", f"ds_write_b128 v120, v[{P[qh]+4*ks}:{P[qh]+4*ks+3}] offset:{ch(24+2*qh+ks)}", "Ow")
    ew = []
    def wr(g):
        for _ in range(ewat.count(g)): emit(ew.pop(0))
    for t in range(7):
        stamp(f"it{t}")
        sm1, tail1 = softmax(1); sm0, tail0 = softmax(0)
        vlate = t == 0 or vg1
        ewat = []
        if t == 6:
            ew = [owrite(0, j, i) for j in range(1, 4) for i in range(4)] + [pwrite(0, 0)] + [owrite(1, j, i) for j in range(1, 4) for i in range(4)]
            ewat = list(ewat6); assert len(ewat) >= 13
        order = [1, 5, 2, 6, 3, 7, 0, 4] if t == 6 else list(range(8))
        if vgl: VG = vgl[t]
        for s in range(8):
            if s == 0: wlg(("Kr", t + 1, 7 if kg0 < 2 else 3))
            if s == 2 and kg0 >= 2: wlg(("Kr", t + 1, 7))
            e(qk(0, s, f"v[{NM[0]}:{NM[0]+15}]"))
            if early and not (vlate and s == VG): pt()
            for it in sm1[s]: emit(it)
            if vlate and s == VG: wvm("V", t)
            if vlate and s >= VG:
                n = 8 - VG
                for i in range((s - VG) * 8 // n, (s - VG + 1) * 8 // n): emit(vread(t, order[i], 0)); emit(vread(t, order[i], 1))
            if not (early and not (vlate and s == VG)): pt()
        for n, i in enumerate(order):
            if vlate:
                if n == 0: e(e.wlg(("Vr", t, order[wst])))
                if n == wst + 1: e(e.wlg(("Vr", t, order[7]))); done("V", t)
            elif n == 0: wlg(("Vr", t, 7))
            e(pv(0, i, t == 0))
            if early: pt()
            for it in sm1[8 + n]: emit(it)
            wr(8 + n)
            if not early: pt()
        if t == 6: stamp("6G3")
        if t + 2 < 8 and not kg4: wvm("K", t + 2)
        for it in tail1: emit(it)
        for s in range(8):
            e(qk(1, s, f"v[{NM[1]}:{NM[1]+15}]"))
            if early: pt()
            for it in sm0[s]: emit(it)
            if t + 2 < 8 and not kg4: emit(kread(t + 2, s))
            wr(16 + s)
            if not early: pt()
        rdv = t < 6 and not vg1
        if rdv: wvm("V", t + 1)
        for n, i in enumerate(order):
            if t + 2 < 8 and kg4 and n == kg0: wvm("K", t + 2)
            e(pv(1, i, t == 0))
            if early: pt()
            for it in sm0[8 + n]: emit(it)
            if rdv: emit(vread(t + 1, i, 0)); emit(vread(t + 1, i, 1))
            if t + 2 < 8 and kg4 and 0 <= n - kg0 < 4: emit(kread(t + 2, 2 * (n - kg0))); emit(kread(t + 2, 2 * (n - kg0) + 1))
            wr(24 + n)
            if not early: pt()
        e("s_nop 0")
        for it in tail0: emit(it)
    stamp("it7")
    sm1, tail1 = softmax(1)
    ML = 16; G = 52; RB = [128, 176]
    aP = lambda qh, j, ks: [0, 8, 64, 72, 192, 200][qh * 3 + j - 1] + 4 * ks
    def v7(j):
        return [("lg", f"ds_read_b64_tr_b16 a[{aV(j,ks)+2*u}:{aV(j,ks)+2*u+1}], v{VA if j == 0 else 124+j} offset:{slot('V',7)*8192 + ks*4096 + u*2048}", ("V7", j))
                for ks in range(2) for u in range(2)]
    def rdpo(qh, j):
        o = [("lg", f"ds_read_b128 a[{aP(qh,j,ks)}:{aP(qh,j,ks)+3}], v{120+j} offset:{ch(24+2*qh+ks)}", ("Or", qh, j)) for ks in range(2)]
        for i in range(4):
            b = RB[qh] + (j - 1) * 16 + 4 * i
            o.append(("lg", f"ds_read_b128 v[{b}:{b+3}], v{120+j} offset:{ch((qh*3+j-1)*4+i)}", ("Or", qh, j)))
        return o
    def mf(qh, j, ks):
        b = RB[qh] + (j - 1) * 16
        e(f"v_mfma_f32_32x32x16_bf16 v[{b}:{b+15}], a[{aV(j,ks)}:{aV(j,ks)+3}], a[{aP(qh,j,ks)}:{aP(qh,j,ks)+3}], v[{b}:{b+15}]")
    def gcalc(qh):
        n = [ML + 4 * j + 2 * qh for j in range(4)]; t = 48 + 2 * qh
        o = [f"v_min3_f32 v{t}, v{n[0]}, v{n[1]}, v{n[2]}", f"v_min_f32 v{t}, v{t}, v{n[3]}"]
        o += [f"v_sub_f32 v{G+4*qh+j}, v{t}, v{n[j]}" for j in range(4)]
        o += [f"v_exp_f32 v{G+4*qh+j}, v{G+4*qh+j}" for j in range(4)]
        o += [f"v_mul_f32 v{t+1}, v{G+4*qh}, v{n[0]+1}"] + [f"v_fma_f32 v{t+1}, v{G+4*qh+j}, v{n[j]+1}, v{t+1}" for j in range(1, 4)]
        o += [f"v_rcp_f32 v{t+1}, v{t+1}", "s_nop 0"] + [f"v_mul_f32 v{G+4*qh+j}, v{G+4*qh+j}, v{t+1}" for j in range(4)]
        return o
    def comb(qh, j, lo=0, hi=16):
        r = G + 4 * qh + j; g = f"v[{r & ~1}:{(r & ~1)+1}]"; s = r & 1; o = []
        for x in range(lo, hi, 2):
            d = OV[qh] + x; b = RB[qh] + (j - 1) * 16 + x
            o.append(f"v_pk_mul_f32 v[{d}:{d+1}], v[{d}:{d+1}], {g} op_sel:[0,{s}] op_sel_hi:[1,{s}]" if j == 0 else
                     f"v_pk_fma_f32 v[{d}:{d+1}], v[{b}:{b+1}], {g}, v[{d}:{d+1}] op_sel:[0,{s},0] op_sel_hi:[1,{s},1]")
        return o
    def fin(qh, k):
        cb = 32 + 8 * qh + 4 * k; o = OV[qh] + 8 * k
        return [f"v_cvt_pk_bf16_f32 v{cb+x}, v{o+2*x}, v{o+2*x+1}" for x in (0, 2, 1, 3)] + ["s_nop 0",
               f"v_permlane32_swap_b32 v{cb}, v{cb+2}", f"v_permlane32_swap_b32 v{cb+1}, v{cb+3}",
               f"buffer_store_dwordx4 v[{cb}:{cb+3}], v124, s[36:39], s{24-qh} offen offset:{k*32} {oflags}"]
    def run(L):
        for x in L: emit(x) if isinstance(x, tuple) else e(x)
    def sm(*rs):
        for r in rs: run(sm1[r])
    def w(n):
        for _ in range(n):
            if ew: emit(ew.pop(0))
    g0 = gcalc(0); g1 = gcalc(1)
    e(f"v_mov_b32 v60, v{LS[0]}"); emit(pwrite(0, 1)); e(f"v_mov_b32 v{ML}, v{NM[0]}"); e(f"v_mov_b32 v{ML+2}, v{NM[1]}")
    e(f"v_permlane32_swap_b32 v60, v{LS[0]}"); e(f"v_add_f32 v{ML+1}, v60, v{LS[0]}")
    e.lgop(f"ds_write_b128 v120, v[{ML}:{ML+3}] offset:{ch(28)}", "OwA")
    pt()
    assert not PT and len([x for x in e.vm if x != "PF"]) == 4 + 128, (PT.keys(), len(e.vm))
    wvm("V", 7); run(v7(0))
    sm(*range(0, preA))
    e(e.wlg("OwA")); e("s_barrier"); stamp("barA")
    for j in range(1, 4): e.lgop(f"ds_read_b128 v[{ML+4*j}:{ML+3+4*j}], v{120+j} offset:{ch(28)}", "ml")
    run(v7(1)); run(rdpo(0, 1))
    rs = list(range(preA, 16))
    def smn(n):
        for _ in range(n):
            if rs: sm(rs.pop(0))
    e(e.wlg(("V7", 0))); e(pv(0, 0)); run(v7(2)); smn(1); e(pv(0, 4)); run(rdpo(0, 2)); smn(2)
    e(e.wlg(("Or", 0, 1))); mf(0, 1, 0); run(v7(3)); smn(1); mf(0, 1, 1); run(rdpo(0, 3)); smn(2)
    e(e.wlg(("Or", 0, 2))); mf(0, 2, 0); smn(1); w(1); mf(0, 2, 1); smn(1); w(1); smn(1)
    e(e.wlg(("Or", 0, 3))); mf(0, 3, 0); w(1); smn(1); mf(0, 3, 1); w(1)
    while rs: smn(1); w(1)
    e("s_nop 0"); run(tail1)
    e(f"v_mov_b32 v61, v{LS[1]}"); emit(pwrite(1, 0)); e(pv(1, 0)); emit(pwrite(1, 1))
    e(f"v_permlane32_swap_b32 v61, v{LS[1]}"); e(f"v_add_f32 v{ML+3}, v61, v{LS[1]}"); e(pv(1, 4))
    e.lgop(f"ds_write_b32 v120, v{ML+3} offset:{ch(28)+12}", "Ow")
    gg = g0[:10] + g1[:10] + g0[10:]
    while ew: w(1); run(gg[:5]); gg = gg[5:]
    run(gg)
    e(f"s_mov_b32 s17, {fbits(2.0**60):#x}")
    e(f"v_max3_u32 v60, v{ML+1}, v{ML+3}, v{ML+5}"); e(f"v_max3_u32 v60, v60, v{ML+9}, v{ML+13}")
    if precomb: run(comb(0, 0)); run(comb(0, 1))
    stamp("loopend")
    e("s_waitcnt lgkmcnt(0)"); stamp("ewr"); e("s_barrier"); stamp("ebar")
    run(rdpo(1, 1))
    for j in range(1, 4): e.lgop(f"ds_read_b32 v{ML+3+4*j}, v{120+j} offset:{ch(28)+12}", "ml")
    run(rdpo(1, 2))
    if not precomb: run(comb(0, 0)); run(comb(0, 1))
    run(comb(0, 2)); run(comb(0, 3))
    f0 = fin(0, 0); f1 = fin(0, 1)
    sc = [f"v_mul_f32 v{OV[1]+x}, v{OV[1]+x}, v{G+4}" for x in range(16)]
    e(e.wlg(("Or", 1, 1))); mf(1, 1, 0); run(rdpo(1, 3)); mf(1, 1, 1); run(f0[:4] + f1[:4] + f0[5:])
    e(e.wlg(("Or", 1, 2))); mf(1, 2, 0); run(f1[5:]); run(g1[10:15]); mf(1, 2, 1); run(g1[16:])
    e(f"v_max3_u32 v60, v60, v{ML+7}, v{ML+11}"); e(f"v_max_u32 v60, v60, v{ML+15}")
    e("v_cmp_le_u32 vcc, s17, v60"); e("s_cmp_eq_u32 s40, 0")
    e(e.wlg(("Or", 1, 3))); mf(1, 3, 0); run(sc[:6]); mf(1, 3, 1)
    e("s_cselect_b64 vcc, vcc, 0"); run(sc[6:]); e("s_cbranch_vccnz L_slow")
    stamp("chk")
    f0 = fin(1, 0); f1 = fin(1, 1)
    run(comb(1, 1, 0, 8)); run(comb(1, 2, 0, 8)); run(comb(1, 3, 0, 8)); run(f0[:4]); run(comb(1, 1, 8, 16)); run(f0[5:])
    run(comb(1, 2, 8, 16)); run(comb(1, 3, 8, 16)); run(f1)
    if spin:
        stamp("stores"); e("s_waitcnt vmcnt(0)"); stamp("end"); e("s_waitcnt lgkmcnt(0)")
        a, b = names.index(spin[0]), names.index(spin[1])
        e("s_cmp_eq_u32 s2, 133"); e("s_cbranch_scc0 L_end"); e("s_cmp_eq_u32 s20, 0"); e("s_cbranch_scc0 L_end")
        e(f"s_sub_u32 s4, s{SB+2*b}, s{SB+2*a}"); e("s_lshl_b32 s4, s4, 2"); e("s_min_u32 s4, s4, 0x40000")
        k = names.index("end")
        e.lab("L_spin"); e("s_sleep 1"); e("s_memtime s[6:7]"); e("s_waitcnt lgkmcnt(0)")
        e(f"s_sub_u32 s6, s6, s{SB+2*k}"); e("s_cmp_lt_u32 s6, s4"); e("s_cbranch_scc1 L_spin")
    elif dbg:
        stamp("stores"); e("s_waitcnt vmcnt(0)"); stamp("end")
        e("s_memrealtime s[64:65]")
        e("s_load_dwordx2 s[4:5], s[0:1], 40"); e("s_waitcnt lgkmcnt(0)")
        e("s_mov_b32 s6, 0x100000"); e("s_mov_b32 s7, 0x20000")
        e("s_lshl_b32 s8, s2, 2"); e("s_add_u32 s8, s8, s20"); e("s_lshl_b32 s8, s8, 7")
        e("v_mov_b32 v16, s62"); e("v_mov_b32 v17, s64"); e("v_mov_b32 v18, 0"); e("v_mov_b32 v19, 0")
        for k in range(len(names)): e(f"v_mov_b32 v{20+k}, s{SB+2*k}")
        e("v_mov_b32 v1, 0"); e("s_mov_b64 exec, 1")
        for j in range(0, 4 + len(names), 4): e(f"buffer_store_dwordx4 v[{16+j}:{19+j}], v1, s[4:7], s8 offen offset:{j*4}")
        e("s_waitcnt vmcnt(0)")
        open(path + ".names", "w").write(" ".join(names))
    assert len(names) <= 18, names
    e.lab("L_end")
    e("s_endpgm")
    e.lab("L_slow")
    e("s_waitcnt lgkmcnt(0)"); e("s_barrier")
    e("s_mov_b32 s40, 1"); e("s_mov_b32 s16, s26"); e("s_mov_b32 s17, 0")
    e.lab("L_slow_loop")
    e("s_mov_b32 m0, s25"); e("s_nop 0")
    for i in range(8):
        if i == 4: e("s_add_u32 m0, s25, 4096"); e("s_add_u32 s16, s16, 4096")
        e(f"buffer_load_dwordx4 v{KD+i%4}, s[28:31], s16 offen offset:{(i%4)*1024} lds")
    e(f"s_add_u32 s16, s16, {32768-4096}")
    e("s_waitcnt vmcnt(0)")
    for s in range(8): e(f"ds_read_b128 a[{aK(s)}:{aK(s)+3}], v{KA+s}")
    e("s_waitcnt lgkmcnt(0)")
    for qh in range(2):
        for s in range(8): e(qk(qh, s, "0"))
    e("s_nop 15")
    for qh in range(2):
        for r in range(0, 16, 2): e(f"v_max3_f32 v{MT[qh]}, v{S[qh]+r}, v{S[qh]+r+1}, v{MT[qh]}")
    e("s_add_u32 s17, s17, 1"); e("s_cmp_lt_u32 s17, 8"); e("s_cbranch_scc1 L_slow_loop")
    e("s_branch L_restart")
    tailtxt = ['.section .rodata,"a"', ".p2align 6", f".amdhsa_kernel {KN}",
               "  .amdhsa_next_free_vgpr 512", "  .amdhsa_next_free_sgpr 102", "  .amdhsa_accum_offset 256",
               "  .amdhsa_group_segment_fixed_size 0", "  .amdhsa_kernarg_size 48", "  .amdhsa_user_sgpr_count 2",
               "  .amdhsa_user_sgpr_kernarg_segment_ptr 1", "  .amdhsa_system_sgpr_workgroup_id_x 1", ".end_amdhsa_kernel"]
    if path and touch:
        import subprocess, re
        for pg in (1, 2):
            open("_t.s", "w").write("\n".join(hdr + e.L + [f"L_pg{k}:" for k in range(pg, 3)] + tailtxt) + "\n")
            subprocess.check_call("clang -target amdgcn-amd-amdhsa -mcpu=gfx950 -c _t.s -o _t.o", shell=True)
            ad = [int(m, 16) for m in re.findall(r"// ([0-9A-F]{12}):", subprocess.check_output("llvm-objdump -d _t.o", shell=True).decode())]
            ad = [a - pad for a in ad if a >= pad]
            idx = [i for i, x in enumerate(e.L) if x.startswith(" ")]; assert len(idx) == len(ad)
            k = idx[min(i for i, a in enumerate(ad) if a >= 4096 * pg and e.L[idx[i]].split()[0].startswith("v_mfma"))]
            e.L[k:k] = [f"L_pg{pg}:", "    s_cbranch_scc1 L_back"]
    if path: open(path, "w").write("\n".join(hdr + e.L + tailtxt) + "\n")
    return e.P

def parse(s): return [(u[0], int(u[1]), "ab".index(u[2]), int(u[4:])) for u in s.split()]
def both(name, sched, **kw):
    for dbg in (False, True, "lite"):
        assert gen(f"mb/{name}{ {False: '', True: '_dbg', 'lite': '_l'}[dbg]}.s", parse(sched), dbg=dbg, **kw) is not None
```
